```python
import torch

def _softmax(x, axis=-1):
    return torch.softmax(x, dim=axis)
def _gelu(x):
    return torch.nn.functional.gelu(x, approximate="tanh")
def _silu(x):
    return torch.nn.functional.silu(x)
def _sigmoid(x):
    return torch.sigmoid(x)
def _layernorm(x, axis=-1, eps=1e-5):
    m = x.mean(dim=axis, keepdim=True)
    v = x.var(dim=axis, keepdim=True, unbiased=False)
    return (x - m) / torch.sqrt(v + eps)
def _scatter_add(tgt, idx, src, axis=0):
    return tgt.clone().index_add_(axis, idx, src)
def _segment_sum(src, seg, n):
    out = torch.zeros((n,) + src.shape[1:], dtype=src.dtype)
    return out.index_add_(0, seg, src)
def _pad(x, pw):
    flat = tuple(v for pair in reversed(pw) for v in pair)
    return torch.nn.functional.pad(x, flat)

kernel_name = 'parallel_sum__linear_attn_block__mixer_token_mlp__prompt'

def setup_inputs():

    _w = (lambda a: (lambda t: t.to(torch.bfloat16) if t.is_floating_point() else t)(torch.as_tensor(a)))
    def _A_setup():
        B, S, D = 1, 2048, 640
        return {
            "x": _w((lambda *s: torch.randn(*s, dtype=torch.bfloat16) * 0.05)(B, S, D)),
            "wqkv": _w((lambda *s: torch.randn(*s, dtype=torch.bfloat16) * 0.05)(D, 3 * D)),
            "wo": _w((lambda *s: torch.randn(*s, dtype=torch.bfloat16) * 0.05)(D, D)),
        }
    _A_in = _A_setup()

    def _B_setup():
        B, S, D, F = 1, 2048, 640, 1728
        return {
            "x": _w((lambda *s: torch.randn(*s, dtype=torch.bfloat16) * 0.05)(B, S, D)),
            "w1": _w((lambda *s: torch.randn(*s, dtype=torch.bfloat16) * 0.4)(S, F) * (S ** -0.5)),
            "b1": _w((lambda *s: torch.randn(*s, dtype=torch.bfloat16) * 3.2)(F) * 0.02),
            "w2": _w((lambda *s: torch.randn(*s, dtype=torch.bfloat16) * 0.2)(F, S) * (F ** -0.5)),
            "b2": _w((lambda *s: torch.randn(*s, dtype=torch.bfloat16) * 0.4)(S) * 0.02),
        }
    _B_in = _B_setup()

    return {
        "A_x": _A_in["x"],
        "A_wqkv": _A_in["wqkv"],
        "A_wo": _A_in["wo"],
        "B_x": _B_in["x"],
        "B_w1": _B_in["w1"],
        "B_b1": _B_in["b1"],
        "B_w2": _B_in["w2"],
        "B_b2": _B_in["b2"],
    }

def reference(A_x, A_wqkv, A_wo, B_x, B_w1, B_b1, B_w2, B_b2):
    def _A_ref(x, wqkv, wo):
        B, S, D = x.shape
        H = 32; Dh = D // H
        qkv = (lambda x, *d: x.permute(*d))((x @ wqkv).reshape(B, S, 3, H, Dh), 2, 0, 3, 1, 4)
        q, k, v = qkv[0], qkv[1], qkv[2]
        phi = lambda t: torch.where(t > 0, t + 1, torch.exp(t)) + 1e-6
        pq, pk = phi(q), phi(k)
        kv = torch.einsum("bhsd,bhse->bhde", pk, v)
        z = torch.einsum("bhsd->bhd", pk)
        num = torch.einsum("bhqd,bhde->bhqe", pq, kv)
        den = torch.einsum("bhqd,bhd->bhq", pq, z)[..., None] + 1e-6
        o = num / den
        return (lambda x, *d: x.permute(*d))(o, 0, 2, 1, 3).reshape(B, S, D) @ wo

    def _B_ref(x, w1, b1, w2, b2):
        B, S, D = x.shape
        h = _layernorm(x, axis=-1)
        u = torch.einsum("bsd,sf->bdf", h, w1) + b1
        u = _gelu(u)
        y = torch.einsum("bdf,fs->bds", u, w2) + b2
        return (lambda x, *d: x.permute(*d))(y, 0, 2, 1)

    x = A_x
    xn = _layernorm(x, axis=-1)
    return x + _A_ref(xn, A_wqkv, A_wo) + _B_ref(xn, B_w1, B_b1, B_w2, B_b2)
```

```python
import re
TRANS = ("v_exp_f32","v_log_f32","v_rcp_f32","v_rsq_f32","v_sqrt_f32","v_sin_f32","v_cos_f32")
def regs_of(op):
    op = op.strip()
    op = re.sub(r"^-", "", op); op = re.sub(r"^abs\((.*)\)$", r"\1", op); op=op.strip("|")
    m = re.fullmatch(r"([vsa])(\d+)", op)
    if m: return {(m.group(1), int(m.group(2)))}
    m = re.fullmatch(r"([vsa])\[(\d+):(\d+)\]", op)
    if m: return {(m.group(1), i) for i in range(int(m.group(2)), int(m.group(3))+1)}
    if op in ("vcc","vcc_lo","vcc_hi"): return {("vcc",0)}
    if op == "m0": return {("m0",0)}
    if op in ("exec","exec_lo","exec_hi"): return {("exec",0)}
    return set()
class Ins:
    def __init__(s, text):
        s.text = text
        t = text.split(";")[0].strip()
        s.label = t.endswith(":")
        s.dir = t.startswith(".") or t == ""
        p = t.split(None, 1)
        s.op = p[0] if p else ""
        rest = p[1] if len(p) > 1 else ""
        ops = [o.strip() for o in rest.split(",")] if rest else []
        if ops:
            last = ops[-1].split()
            s.mods = last[1:]; ops[-1] = last[0] if last else ""
        else: s.mods = []
        s.ops = ops
        op = s.op
        s.mfma = op.startswith("v_mfma")
        s.passes = (8 if "32x32x16" in op else 2 if "4x4x4" in op else 4) if s.mfma else 0
        s.valu = op.startswith("v_") and not s.mfma
        s.trans = any(op.startswith(x) for x in TRANS)
        s.dot = op.startswith("v_dot")
        s.ds = op.startswith("ds_")
        s.vmem = op.startswith("buffer_") or op.startswith("global_")
        s.salu = op.startswith("s_")
        s.dpp = "_dpp" in op
        s.perm = op.startswith("v_permlane")
        R = [regs_of(o) for o in ops]
        dst=set(); src=set()
        if s.label or s.dir: pass
        elif s.mfma:
            dst=R[0]; src=R[1]|R[2]|R[3]; s.srcC=R[3]; s.srcAB=R[1]|R[2]
        elif s.valu:
            dst=R[0]; src=set().union(*R[1:]) if len(R)>1 else set()
            if op.startswith("v_cmp"): pass
            if "_co_" in op: dst=R[0]|R[1]; src=set().union(*R[2:])
            if op.startswith(("v_fmac","v_dot2c","v_pk_fmac")) or s.dpp: src|=R[0]
            if s.perm: dst=R[0]|R[1]; src=R[0]|R[1]
            if op.startswith("v_cmpx"): dst=dst|{("exec",0)}
        elif s.ds:
            if op.startswith("ds_read") or "permute" in op or "swizzle" in op: dst=R[0]; src=set().union(*R[1:])
            else: src=set().union(*R)
        elif s.vmem:
            lds = "lds" in s.mods
            if "load" in op and not lds: dst=R[0]; src=set().union(*R[1:])
            else: src=set().union(*R)
            if lds: src|={("m0",0)}
            s.wide_store = ("store" in op and ("x4" in op or "x3" in op))
            s.sdata = R[0] if "store" in op and op.startswith("buffer") else set()
        elif s.salu:
            if op.startswith(("s_cmp","s_waitcnt","s_barrier","s_nop","s_branch","s_cbranch","s_endpgm","s_setprio","s_sleep","s_bitcmp")): src=set().union(*R) if R else set()
            else:
                dst=R[0] if R else set(); src=set().union(*R[1:]) if len(R)>1 else set()
                if "saveexec" in op: dst=dst|{("exec",0)}
        s.dst=dst; s.src=src
    def states(s):
        if s.label or s.dir: return 0
        if s.op=="s_nop": return int(s.ops[0],0)+1
        return 1
def need(p, c):
    n=0
    vd = {r for r in p.dst if r[0] in "va"}
    sd = {r for r in p.dst if r[0] in ("s","vcc")}
    if p.valu:
        if c.mfma and vd & c.src: n=max(n,2)
        if p.trans and c.valu and vd & c.src: n=max(n,1)
        if p.trans and (c.ds or c.vmem) and vd & c.src: n=max(n,1)
        if (c.dpp or c.perm) and vd & c.src: n=max(n,2)
        if c.op.startswith(("v_readfirstlane","v_readlane")) and vd & c.src: n=max(n,1)
        if sd and c.valu and sd & c.src: n=max(n,2)
        if sd and c.valu and ("vcc",0) in sd and c.op.startswith(("v_cndmask","v_addc")): n=max(n,2)
        if sd and c.vmem and sd & c.src: n=max(n,5)
        if sd and c.salu and sd & c.src: n=max(n,1)
        if p.dot and not (c.op==p.op) and (vd & (c.src|c.dst)): n=max(n,3)
        if p.dot and c.op==p.op and (vd & (c.src - c.dst)): n=max(n,3)
        if ("exec",0) in p.dst and (c.mfma or c.perm): n=max(n,4)
        if ("exec",0) in p.dst and c.dpp: n=max(n,5)
        if "sdwa" in p.op and c.valu and vd & c.src: n=max(n,1)
    if p.mfma:
        big = p.passes==8
        if c.mfma:
            if vd & c.srcAB: n=max(n,12 if big else 8)
            if vd & c.srcC and not (c.srcC==p.dst and c.passes==p.passes): n=max(n,10 if big else 6)
            if vd & c.dst and not (c.dst==p.dst and c.passes==p.passes): n=max(n,12 if big else 8)
        elif (c.valu or c.ds or c.vmem) and vd & (c.src|c.dst): n=max(n,12 if big else 8)
        if c.valu and p.srcC & c.dst: n=max(n,7 if big else 3)
    if p.salu and ("m0",0) in p.dst and ("m0",0) in c.src and c.vmem: n=max(n,1)
    if p.vmem and getattr(p,"wide_store",False) and (p.sdata & c.dst): n=max(n,2 if c.valu or c.mfma else 1)
    return n
class Asm:
    def __init__(s): s.L=[]
    def __call__(s, text):
        for t in text.split("\n"):
            t=t.strip()
            if t: s.L.append(t)
    def finish(s):
        out=[]; hist=[]
        for t in s.L:
            c=Ins(t)
            if not (c.label or c.dir):
                req=0; dist=0
                for p in reversed(hist):
                    if dist>=20: break
                    k=need(p,c)-dist
                    if k>req: req=k
                    dist+=p.states()
                while req>0:
                    k=min(req,16); nop=Ins(f"s_nop {k-1}"); out.append(nop.text); hist.append(nop); req-=k
                hist.append(c)
                if c.op in ("s_branch","s_endpgm"): hist=[]
            out.append(t)
        return "\n".join(out)+"\n"
```

```python
import sys
from asmlib import Asm
NAME = "parallel_sum__linear_attn_block__mixer_token_mlp__prompt"
WS_HT, WS_PQ, WS_UW, WS_OT, WS_KVP = 0, 0x280000, 0x500000, 0x800000, 0xB00000
SZ_X = 2048*640*2; SZ_WQKV = 640*1920*2; SZ_WO = 640*640*2; SZ_W1 = 2048*1728*2; SZ_W2 = SZ_W1
SZ_UW = 640*4736; SZ_KVP = 128*6720
OOB = 0x40000000
LOG2E = 1.4426950408889634
import struct
def f2u(x): return "0x%08x" % struct.unpack("<I", struct.pack("<f", x))[0]

def srd(A, d, p, size, off=0):
    if off:
        A(f"s_add_u32 s{d}, s{p}, {off}\ns_addc_u32 s{d+1}, s{p+1}, 0")
    else:
        A(f"s_mov_b32 s{d}, s{p}\ns_mov_b32 s{d+1}, s{p+1}")
    A(f"s_mov_b32 s{d+2}, {size}\ns_mov_b32 s{d+3}, 0x00020000")
def vr(b, n): return f"v[{b}:{b+n-1}]"
def sr(b, n=4): return f"s[{b}:{b+n-1}]"
def head(A, k):
    A(f".globl {k}\n.p2align 8\n.type {k},@function\n{k}:")
    A(f"s_cmp_ge_u32 s2, 256\ns_cbranch_scc1 {k}_end")
def ids(A):
    A("v_and_b32 v1, 63, v0\nv_lshrrev_b32 v2, 6, v0\ns_and_b32 s40, s2, 7\ns_lshr_b32 s41, s2, 3\nv_readfirstlane_b32 s42, v2")
def bf16r(A, d, s):
    A(f"v_cvt_pk_bf16_f32 v{d}, v{s}, v{s}\nv_and_b32 v{d}, 0xffff0000, v{d}")
def halfsum(A, r, t):
    A(f"v_mov_b32 v{t}, v{r}\nv_permlane32_swap_b32 v{t}, v{r}\nv_add_f32 v{r}, v{t}, v{r}")
def ln_scalars(A, sx, sxx, mb, rs, t):
    A(f"v_mul_f32 v{sx}, {f2u(1/640)}, v{sx}\nv_mul_f32 v{sxx}, {f2u(1/640)}, v{sxx}")
    A(f"v_fma_f32 v{sxx}, -v{sx}, v{sx}, v{sxx}\nv_max_f32 v{sxx}, 0, v{sxx}")
    bf16r(A, mb, sx); bf16r(A, t, sxx)
    A(f"v_add_f32 v{t}, {f2u(1e-5)}, v{t}"); bf16r(A, t, t)
    A(f"v_sqrt_f32 v{t}, v{t}"); bf16r(A, t, t)
    A(f"v_rcp_f32 v{rs}, v{t}")

P0_SLOT = 36864; P0_X = 147456
def p0_gemm(A, kind):
    L = f"p0{kind}"
    A("s_lshl_b32 s45, s43, 7\ns_lshl_b32 s46, s42, 5\ns_add_u32 s45, s45, s46")
    A("v_lshrrev_b32 v2, 3, v1\nv_add_u32 v2, s45, v2\nv_mul_u32_u24 v2, 1280, v2")
    A("v_lshrrev_b32 v3, 4, v1\nv_and_b32 v4, 7, v1")
    for m in range(4):
        A(f"v_add_u32 v5, {4*m}, v3\nv_and_b32 v5, 7, v5\nv_xor_b32 v5, v5, v4\nv_lshl_add_u32 v{10+m}, v5, 4, v2")
        if m: A(f"v_add_u32 v{10+m}, {8*m*1280}, v{10+m}")
    A("s_mul_i32 s46, s42, 320")
    for m in range(5):
        A(f"v_add_u32 v5, s46, v1")
        if m: A(f"v_add_u32 v5, {64*m}, v5")
        A("v_mul_u32_u24 v6, 3277, v5\nv_lshrrev_b32 v6, 16, v6")
        A("v_mul_u32_u24 v7, 20, v6\nv_sub_u32 v7, v5, v7")
        A("v_mul_u32_u24 v6, 3840, v6\nv_lshl_add_u32 v6, v7, 4, v6")
        if kind == "kv":
            A("v_cmp_le_u32 vcc, 10, v7\nv_mov_b32 v8, 0\nv_mov_b32 v9, 1120\nv_cndmask_b32 v8, v8, v9, vcc\nv_add_u32 v6, v8, v6")
        A(f"v_add_u32 v{14+m}, s47, v6")
    def dma(m):
        if m < 4: A(f"s_add_u32 m0, s53, {m*1024}\nbuffer_load_dwordx4 v{10+m}, s[16:19], s51 offen lds")
        else: A(f"s_add_u32 m0, s57, {(m-4)*1024}\nbuffer_load_dwordx4 v{10+m}, s[20:23], s52 offen lds")
    def dma_adv():
        A(f"s_add_u32 s58, s58, 1\ns_add_u32 s51, s51, 128\ns_add_u32 s52, s52, {64*3840}")
        A(f"s_cmp_ge_u32 s58, 10\ns_cselect_b32 s51, {OOB}, s51\ns_cselect_b32 s52, {OOB}, s52")
        A(f"s_and_b32 s59, s58, 3\ns_mul_i32 s59, s59, {P0_SLOT}\ns_add_u32 s53, s59, s60\ns_add_u32 s57, s59, s61")
    A("s_lshl_b32 s60, s42, 12\ns_mul_i32 s61, s42, 5120\ns_add_u32 s61, s61, 16384")
    A("s_mov_b32 s58, 0\ns_mov_b32 s51, 0\ns_mov_b32 s52, 0\ns_mov_b32 s53, s60\ns_mov_b32 s57, s61")
    for st in range(3):
        for m in range(9): dma(m)
        dma_adv()
    A("v_and_b32 v2, 31, v1\nv_lshrrev_b32 v3, 5, v1\nv_lshrrev_b32 v4, 1, v2\nv_and_b32 v4, 7, v4")
    A("v_lshlrev_b32 v5, 7, v2\nv_add_u32 v5, s60, v5")
    A("v_bfe_u32 v6, v1, 2, 2\nv_lshl_add_u32 v6, v3, 3, v6\nv_mul_u32_u24 v6, 320, v6")
    A("v_bfe_u32 v7, v1, 4, 1\nv_lshlrev_b32 v7, 5, v7\nv_and_b32 v8, 3, v1\nv_lshl_add_u32 v7, v8, 3, v7\nv_add_u32 v6, v6, v7\nv_add_u32 v6, 16384, v6")
    for jj in range(4):
        A(f"s_add_u32 s45, s42, {jj}\ns_and_b32 s45, s45, 3\ns_lshl_b32 s46, s45, 1\ns_mul_i32 s45, s45, 5120")
        A(f"v_add_u32 v7, s46, v3\nv_xor_b32 v7, v7, v4\nv_lshl_add_u32 v{20+jj}, v7, 4, v5\nv_add_u32 v{24+jj}, s45, v6")
    A("s_mov_b32 s55, 0x3f803f80\ns_mov_b32 s50, 0\ns_mov_b32 s54, 0")
    for r in list(range(36, 45)) + list(range(96, 176)): A(f"v_mov_b32 v{r}, 0")
    SET = [48, 72]
    def reads(jj):
        b = SET[jj & 1]
        A(f"ds_read_b128 {vr(b,4)}, v{28+jj}")
        for n in range(5):
            for hh in range(2):
                A(f"ds_read_b64_tr_b16 {vr(b+4+4*n+2*hh,2)}, v{32+jj} offset:{hh*1280+n*64}")
    A(f"{L}_loop:")
    for jj in range(4): A(f"v_add_u32 v{28+jj}, s54, v{20+jj}\nv_add_u32 v{32+jj}, s54, v{24+jj}")
    A("s_waitcnt vmcnt(18)\ns_barrier")
    reads(0)
    dq = list(range(9))
    for jj in range(4):
        b = SET[jj & 1]
        if jj < 3: reads(jj+1); A("s_waitcnt lgkmcnt(11)")
        else: A("s_waitcnt lgkmcnt(0)")
        dots = []
        for r in range(4):
            dots.append(f"v_dot2c_f32_bf16 v{36+(r&1)}, s55, v{b+r}")
            dots.append(f"v_dot2c_f32_bf16 v{38+(r&1)}, v{b+r}, v{b+r}")
        if jj == 0:
            for r in range(4):
                for n in range(5): dots.append(f"v_dot2c_f32_bf16 v{40+n}, s55, v{b+4+4*n+r}")
        per = (len(dots)+4)//5
        for n in range(5):
            acc = vr(96+16*n, 16)
            if kind == "kv": A(f"v_mfma_f32_32x32x16_bf16 {acc}, {vr(b,4)}, {vr(b+4+4*n,4)}, {acc}")
            else: A(f"v_mfma_f32_32x32x16_bf16 {acc}, {vr(b+4+4*n,4)}, {vr(b,4)}, {acc}")
            for d in dots[n*per:(n+1)*per]: A(d)
            if jj > 0 and n in (0, 2, 4) and dq: dma(dq.pop(0))
    assert not dq
    dma_adv()
    A(f"s_add_u32 s50, s50, 1\ns_and_b32 s54, s50, 3\ns_mul_i32 s54, s54, {P0_SLOT}\ns_cmp_lt_u32 s50, 10\ns_cbranch_scc1 {L}_loop")
    A("v_add_f32 v36, v36, v37\nv_add_f32 v38, v38, v39")
    halfsum(A, 36, 2); halfsum(A, 38, 2)
    for n in range(5): halfsum(A, 40+n, 2)
    A(f"v_and_b32 v2, 31, v1\nv_lshlrev_b32 v2, 2, v2\ns_mul_i32 s45, s42, 640\nv_add_u32 v3, s45, v2\nv_add_u32 v3, {P0_X}, v3\nv_add_u32 v2, {P0_X}, v2")
    for n in range(5): A(f"ds_write_b32 v3, v{40+n} offset:{n*128}")
    ln_scalars(A, 36, 38, 37, 39, 4)
    A("s_waitcnt vmcnt(0) lgkmcnt(0)\ns_barrier")
    for n in range(5):
        for w in range(4): A(f"ds_read_b32 v{48+4*n+w}, v2 offset:{w*640+n*128}")
    if kind == "kv":
        A(f"v_and_b32 v4, 31, v1\nv_lshlrev_b32 v4, 2, v4\ns_lshl_b32 s45, s42, 7\nv_add_u32 v4, s45, v4\nv_add_u32 v4, {P0_X+2560}, v4\nds_write_b32 v4, v39")
    A("v_lshrrev_b32 v5, 16, v37\nv_or_b32 v72, v5, v37\nv_xor_b32 v72, 0x80008000, v72\nv_mov_b32 v73, 0\nv_mov_b32 v74, 0\nv_mov_b32 v75, 0")
    A("v_cmp_gt_u32 vcc, 32, v1")
    A("s_waitcnt lgkmcnt(0)")
    if kind == "kv":
        A(f"v_lshrrev_b32 v4, 5, v1\nv_lshlrev_b32 v4, 4, v4\nv_add_u32 v4, s45, v4\nv_add_u32 v4, {P0_X+2560}, v4")
        for q in range(4): A(f"ds_read_b128 {vr(176+4*q,4)}, v4 offset:{32*q}")
    for n in range(5):
        b = 48+4*n
        A(f"v_add_f32 v{b}, v{b}, v{b+1}\nv_add_f32 v{b+2}, v{b+2}, v{b+3}\nv_add_f32 v{b}, v{b}, v{b+2}")
        bf16r(A, b+1, b)
        A(f"v_sub_f32 v{b+2}, v{b}, v{b+1}\nv_cvt_pk_bf16_f32 v{b}, v{b+1}, v{b+2}\nv_cndmask_b32 v{b}, 0, v{b}, vcc")
        A(f"v_mov_b32 v{b+1}, 0\nv_mov_b32 v{b+2}, 0\nv_mov_b32 v{b+3}, 0")
    for n in range(5):
        acc = vr(96+16*n, 16)
        if kind == "kv": A(f"v_mfma_f32_32x32x16_bf16 {acc}, v[72:75], {vr(48+4*n,4)}, {acc}")
        else: A(f"v_mfma_f32_32x32x16_bf16 {acc}, {vr(48+4*n,4)}, v[72:75], {acc}")
    A(f"s_mov_b32 s62, {f2u(1e-6)}\ns_mov_b32 s63, {f2u(LOG2E)}\nv_mov_b32 v9, s62")
    def phi(r, rsreg, t, keep=None):
        if keep is not None: A(f"v_mul_f32 v{keep}, v{r}, v{rsreg}")
        A(f"v_fma_f32 v{r}, v{r}, v{rsreg}, v9\nv_mul_f32 v{t}, s63, v{r}\nv_exp_f32 v{t}, v{t} clamp\nv_max_f32 v{r}, s62, v{r}\nv_add_f32 v{r}, v{r}, v{t}")
    if kind == "q":
        A("s_lshl_b32 s45, s43, 7\ns_lshl_b32 s46, s42, 5\ns_add_u32 s45, s45, s46\nv_and_b32 v2, 31, v1\nv_add_u32 v2, s45, v2\nv_mul_u32_u24 v2, 1280, v2")
        A("v_lshrrev_b32 v3, 5, v1\nv_lshl_add_u32 v2, v3, 4, v2\nv_add_u32 v2, s47, v2")
        for n in range(5):
            for qq in range(2):
                a = 96+16*n+8*qq; o = 176+8*n+4*qq
                for r in range(8): phi(a+r, 39, 4+(r&3))
                for r in range(4): A(f"v_cvt_pk_bf16_f32 v{o+r}, v{a+2*r}, v{a+2*r+1}")
                A(f"v_permlane32_swap_b32 v{o}, v{o+2}\nv_permlane32_swap_b32 v{o+1}, v{o+3}")
                A(f"buffer_store_dwordx4 {vr(o,4)}, v2, s[24:27], 0 offen offset:{64*n+32*qq}")
        A("s_endpgm")
        return
    A("s_waitcnt lgkmcnt(0)")
    A("v_and_b32 v2, 31, v1\nv_cmp_gt_u32 vcc, 16, v2")
    for n in range(5):
        for r in range(16):
            a = 96+16*n+r
            if n < 2: phi(a, 176+r, 4+(r&3))
            elif n == 2:
                phi(a, 176+r, 4+(r&1), keep=6+(r&1)); A(f"v_cndmask_b32 v{a}, v{6+(r&1)}, v{a}, vcc")
            else: A(f"v_mul_f32 v{a}, v{a}, v{176+r}")
        for r in range(8): A(f"v_cvt_pk_bf16_f32 v{48+8*n+r}, v{96+16*n+2*r}, v{96+16*n+2*r+1}")
    for r in range(4): A(f"v_mov_b32 v{88+r}, s55")
    prods = [(0,2),(0,3),(1,3),(1,4),(2,4)]
    for pi,(dt,et) in enumerate(prods):
        acc = vr(96+16*pi,16)
        A(f"v_mfma_f32_32x32x16_bf16 {acc}, {vr(48+8*dt,4)}, {vr(48+8*et,4)}, 0")
        A(f"v_mfma_f32_32x32x16_bf16 {acc}, {vr(52+8*dt,4)}, {vr(52+8*et,4)}, {acc}")
    for dt in range(3):
        acc = vr(176+16*dt,16)
        A(f"v_mfma_f32_32x32x16_bf16 {acc}, {vr(48+8*dt,4)}, v[88:91], 0")
        A(f"v_mfma_f32_32x32x16_bf16 {acc}, {vr(52+8*dt,4)}, v[88:91], {acc}")
    A("s_mul_i32 s45, s42, 7168\nv_lshrrev_b32 v3, 5, v1\nv_lshlrev_b32 v3, 2, v3\nv_mov_b32 v8, s45\nv_add_u32 v8, 6912, v8")
    for et in (2,3,4):
        A(f"v_add_u32 v4, {32*et-80}, v2")
        A(f"v_mul_i32_i24 v{10+et}, 80, v4\nv_add_u32 v{10+et}, s45, v{10+et}")
        A(f"v_mul_i32_i24 v5, 3277, v4\nv_ashrrev_i32 v5, 16, v5\nv_mul_i32_i24 v5, 20, v5\nv_sub_u32 v{16+et}, v3, v5")
    for pi,(dt,et) in enumerate(prods):
        for q in range(4):
            t = 24+(q&1)*2
            A(f"v_add_u32 v{t}, {32*dt+8*q}, v{16+et}\nv_cmp_gt_u32 vcc, 20, v{t}\nv_lshl_add_u32 v{t+1}, v{t}, 2, v{10+et}\nv_cndmask_b32 v{t+1}, v8, v{t+1}, vcc")
            A(f"ds_write_b128 v{t+1}, {vr(96+16*pi+4*q,4)}")
    A("v_lshlrev_b32 v4, 2, v3\nv_add_u32 v4, s45, v4")
    A("s_mov_b32 exec_lo, 1\ns_mov_b32 exec_hi, 1")
    for dt in range(3):
        for q in range(4):
            if 32*dt+8*q < 80: A(f"ds_write_b128 v4, {vr(176+16*dt+4*q,4)} offset:{6400+(32*dt+8*q)*4}")
    A("s_mov_b64 exec, -1\ns_waitcnt lgkmcnt(0)\ns_barrier")
    A("v_lshlrev_b32 v2, 4, v0")
    for h in range(2):
        for w in range(4): A(f"ds_read_b128 {vr(48+16*h+4*w,4)}, v2 offset:{w*7168+h*4096}")
    A("s_lshl_b32 s45, s43, 3\ns_add_u32 s45, s45, s44\ns_mul_i32 s45, s45, 6720\nv_add_u32 v3, s45, v2")
    A(f"v_add_u32 v4, 4096, v3\nv_mov_b32 v5, {OOB}\nv_cmp_gt_u32 vcc, 164, v0\nv_cndmask_b32 v4, v5, v4, vcc")
    A("s_waitcnt lgkmcnt(0)")
    for h in range(2):
        b = 48+16*h
        for r in range(4): A(f"v_add_f32 v{b+r}, v{b+r}, v{b+4+r}\nv_add_f32 v{b+8+r}, v{b+8+r}, v{b+12+r}\nv_add_f32 v{b+r}, v{b+r}, v{b+8+r}")
        A(f"buffer_store_dwordx4 {vr(b,4)}, v{3+h}, s[24:27], 0 offen")
    A("s_endpgm")

def p0_aux(A):
    HP = 1312; WOL = 49152
    A("s_lshl_b32 s45, s43, 5\ns_lshl_b32 s46, s42, 3\ns_add_u32 s45, s45, s46")
    A("v_lshrrev_b32 v2, 3, v1\nv_add_u32 v3, s45, v2\nv_mul_u32_u24 v3, 1280, v3\nv_and_b32 v4, 7, v1\nv_lshl_add_u32 v3, v4, 4, v3")
    for i in range(10): A(f"buffer_load_dwordx4 {vr(16+4*i,4)}, v3, s[16:19], 0 offen offset:{128*i}")
    A("s_lshr_b32 s47, s43, 3\ns_and_b32 s48, s43, 7\ns_mul_i32 s49, s47, 102400\ns_mul_i32 s50, s48, 160\ns_add_u32 s49, s49, s50")
    for i in range(4):
        A(f"s_add_u32 s50, s42, {4*i}\ns_lshl_b32 s51, s50, 6\nv_add_u32 v5, s51, v1\nv_mul_u32_u24 v6, 6554, v5\nv_lshrrev_b32 v6, 16, v6")
        A(f"v_mul_u32_u24 v7, 10, v6\nv_sub_u32 v7, v5, v7\nv_mul_u32_u24 v6, 1280, v6\nv_lshl_add_u32 v6, v7, 4, v6\nv_add_u32 v6, s49, v6")
        A(f"v_mov_b32 v7, {OOB}\nv_cmp_gt_u32 vcc, 800, v5\nv_cndmask_b32 v6, v7, v6, vcc")
        A(f"s_lshl_b32 s50, s50, 10\ns_add_u32 m0, s50, {WOL}\nbuffer_load_dwordx4 v6, s[28:31], 0 offen lds")
    A("s_lshl_b32 s50, s44, 8\nv_add_u32 v5, s50, v0\nv_mul_u32_u24 v5, 3456, v5\ns_lshr_b32 s50, s40, 1\ns_mul_i32 s50, s50, 896\nv_add_u32 v5, s50, v5")
    for m in range(7): A(f"buffer_load_dword v{240+m}, v5, s[36:39], 0 offen offset:{128*m}")
    A("s_mov_b32 s55, 0x3f803f80")
    def red8(r, t):
        A(f"v_add_f32_dpp v{r}, v{r}, v{r} quad_perm:[1,0,3,2] row_mask:0xf bank_mask:0xf")
        A(f"v_add_f32_dpp v{r}, v{r}, v{r} quad_perm:[2,3,0,1] row_mask:0xf bank_mask:0xf")
        A(f"v_add_f32_dpp v{r}, v{r}, v{r} row_half_mirror row_mask:0xf bank_mask:0xf")
    A("s_waitcnt vmcnt(11)")
    for ln in range(2):
        for r in range(8, 12): A(f"v_mov_b32 v{r}, 0")
        for r in range(40):
            A(f"v_dot2c_f32_bf16 v{8+(r&1)}, s55, v{16+r}\nv_dot2c_f32_bf16 v{10+(r&1)}, v{16+r}, v{16+r}")
        A("v_add_f32 v8, v8, v9\nv_add_f32 v10, v10, v11")
        red8(8, 9); red8(10, 11)
        ln_scalars(A, 8, 10, 14, 12, 9)
        A("v_mul_f32 v14, v14, v12\nv_sub_f32 v14, 0, v14\nv_mov_b32 v13, v12\nv_mov_b32 v15, v14")
        for r in range(40):
            t = 60+2*(r&7)
            A(f"v_lshlrev_b32 v{t}, 16, v{16+r}\nv_and_b32 v{t+1}, 0xffff0000, v{16+r}")
            A(f"v_pk_fma_f32 {vr(t,2)}, {vr(t,2)}, v[12:13], v[14:15]\nv_cvt_pk_bf16_f32 v{16+r}, v{t}, v{t+1}")
    A(f"v_add_u32 v3, s46, v2\nv_mul_u32_u24 v3, {HP}, v3\nv_lshl_add_u32 v3, v4, 4, v3")
    for i in range(10): A(f"ds_write_b128 v3, {vr(16+4*i,4)} offset:{128*i}")
    A("s_waitcnt vmcnt(7) lgkmcnt(0)\ns_barrier")
    A(f"v_lshrrev_b32 v2, 4, v1\nv_bfe_u32 v3, v1, 2, 2\nv_and_b32 v4, 3, v1\nv_lshl_add_u32 v5, v2, 3, v3\nv_mul_u32_u24 v5, {HP}, v5\nv_lshl_add_u32 v5, v4, 3, v5")
    A("s_lshl_b32 s50, s42, 5\nv_add_u32 v5, s50, v5")
    for i in range(10):
        for hh in range(2): A(f"ds_read_b64_tr_b16 {vr(16+4*i+2*hh,2)}, v5 offset:{128*i+hh*4*HP}")
    A("v_and_b32 v6, 15, v1\ns_lshl_b32 s50, s42, 4\nv_add_u32 v7, s50, v6\nv_lshlrev_b32 v7, 12, v7\nv_lshl_add_u32 v7, v2, 4, v7\ns_lshl_b32 s50, s43, 6\nv_add_u32 v7, s50, v7")
    A(f"v_lshl_add_u32 v8, v2, 2, v3\nv_mul_u32_u24 v8, 160, v8\nv_lshl_add_u32 v8, v4, 3, v8\nv_add_u32 v8, {WOL}, v8")
    A("v_mul_u32_u24 v9, 4736, v6\nv_lshl_add_u32 v9, v2, 3, v9\ns_mul_i32 s49, s48, 378880\ns_mul_i32 s50, s47, 160\ns_add_u32 s49, s49, s50\ns_add_u32 s49, s49, 3456\nv_add_u32 v9, s49, v9")
    for m in range(7):
        A(f"s_add_u32 s50, s42, {4*m}\ns_min_u32 s50, s50, 24\ns_mul_i32 s51, s50, 52\ns_lshr_b32 s51, s51, 8\ns_mul_i32 s52, s51, 5\ns_sub_u32 s52, s50, s52")
        A(f"s_mul_i32 s53, s52, 2560\ns_lshl_b32 s54, s51, 5\ns_add_u32 s53, s53, s54\nv_add_u32 v10, s53, v8\nds_read_b64_tr_b16 {vr(60+2*m,2)}, v10")
        A(f"s_mul_i32 s53, s51, {16*4736}\ns_lshl_b32 s54, s52, 5\ns_add_u32 s53, s53, s54\nv_add_u32 v{80+m}, s53, v9")
    A("s_waitcnt lgkmcnt(0)")
    for i in range(10):
        A(f"buffer_store_dwordx4 {vr(16+4*i,4)}, v7, s[24:27], 0 offen\nv_add_u32 v7, {64*4096}, v7")
    for m in range(7): A(f"buffer_store_dwordx2 {vr(60+2*m,2)}, v{80+m}, s[32:35], 0 offen")
    A("s_endpgm")

def p0(A):
    k = "p0_kernel"; head(A, k)
    A("s_load_dwordx4 s[4:7], s[0:1], 0\ns_load_dwordx2 s[8:9], s[0:1], 16\ns_load_dwordx2 s[12:13], s[0:1], 32\ns_load_dwordx2 s[14:15], s[0:1], 80")
    ids(A)
    A("s_lshr_b32 s43, s40, 1\ns_lshl_b32 s43, s43, 2\ns_and_b32 s45, s41, 3\ns_add_u32 s43, s43, s45")
    A("s_waitcnt lgkmcnt(0)")
    srd(A, 16, 4, SZ_X); srd(A, 20, 6, SZ_WQKV)
    A("s_cmp_ge_u32 s41, 24\ns_cbranch_scc1 p0_aux\ns_cmp_ge_u32 s41, 16\ns_cbranch_scc1 p0_q")
    A("s_and_b32 s44, s40, 1\ns_lshl_b32 s44, s44, 2\ns_lshr_b32 s45, s41, 2\ns_add_u32 s44, s44, s45\ns_mul_i32 s47, s44, 160\ns_add_u32 s47, s47, 1280")
    srd(A, 24, 14, SZ_KVP, WS_KVP)
    p0_gemm(A, "kv")
    A("p0_q:")
    A("s_and_b32 s44, s40, 1\ns_lshl_b32 s44, s44, 1\ns_sub_u32 s45, s41, 16\ns_lshr_b32 s45, s45, 2\ns_add_u32 s44, s44, s45\ns_mul_i32 s47, s44, 320")
    srd(A, 24, 14, SZ_X, WS_PQ)
    p0_gemm(A, "q")
    A("p0_aux:")
    A("s_sub_u32 s44, s41, 24\ns_lshl_b32 s43, s40, 3\ns_add_u32 s43, s43, s44")
    srd(A, 24, 14, SZ_X, WS_HT); srd(A, 28, 8, SZ_WO); srd(A, 32, 14, SZ_UW, WS_UW); srd(A, 36, 12, SZ_W1)
    p0_aux(A)
    A(f"{k}_end:\ns_endpgm")

NSL = 5; CSLOT = 20480
def core(A, L, NS, tpitch, kpitch, t_is_A, switch=None, mid=None):
    A("v_lshrrev_b32 v2, 3, v1\nv_and_b32 v4, 7, v1\nv_bfe_u32 v3, v1, 4, 1")
    for m in range(2):
        A(f"s_lshl_b32 s45, s42, 4\nv_add_u32 v5, s45, v2")
        if m: A("v_add_u32 v5, 8, v5")
        A(f"v_mul_u32_u24 v5, {tpitch}, v5\nv_lshlrev_b32 v6, 1, v3")
        if m: A("v_or_b32 v6, 4, v6")
        A(f"v_xor_b32 v6, v6, v4\nv_lshl_add_u32 v5, v6, 4, v5\nv_add_u32 v{10+m}, s47, v5")
    A("v_lshrrev_b32 v3, 4, v1\ns_lshl_b32 s45, s42, 2\nv_add_u32 v3, s45, v3\nv_and_b32 v3, 7, v3\nv_xor_b32 v3, v3, v4")
    for m in range(3):
        A(f"s_lshl_b32 s45, s42, 3\ns_add_u32 s45, s45, {32*m}\nv_add_u32 v5, s45, v2\nv_mul_u32_u24 v6, {kpitch}, v5\nv_lshl_add_u32 v6, v3, 4, v6\nv_add_u32 v{12+m}, s48, v6")
        if m == 2: A(f"v_mov_b32 v7, {OOB}\nv_cmp_gt_u32 vcc, 80, v5\nv_cndmask_b32 v14, v7, v14, vcc")
    A("s_lshl_b32 s60, s42, 11\ns_lshl_b32 s61, s42, 10\ns_add_u32 s61, s61, 8192")
    A("s_mov_b32 s58, 0\ns_mov_b32 s51, 0\ns_mov_b32 s52, 0\ns_mov_b32 s59, 0\ns_mov_b32 s53, s60\ns_mov_b32 s57, s61")
    def dma(m):
        if m < 2: A(f"s_add_u32 m0, s53, {m*1024}\nbuffer_load_dwordx4 v{10+m}, s[16:19], s51 offen lds")
        else: A(f"s_add_u32 m0, s57, {(m-2)*4096}\nbuffer_load_dwordx4 v{10+m}, s[20:23], s52 offen lds")
    def dma_adv():
        A(f"s_add_u32 s58, s58, 1\ns_add_u32 s51, s51, {64*tpitch}\ns_add_u32 s52, s52, 128")
        if switch is not None:
            A(f"s_cmp_eq_u32 s58, {switch}\ns_cselect_b32 s16, s36, s16\ns_cselect_b32 s17, s37, s17\ns_cselect_b32 s18, s38, s18\ns_cselect_b32 s51, 0, s51")
        A(f"s_cmp_ge_u32 s58, {NS}\ns_cselect_b32 s51, {OOB}, s51\ns_cselect_b32 s52, {OOB}, s52")
        A(f"s_add_u32 s59, s59, {CSLOT}\ns_cmp_ge_u32 s59, {NSL*CSLOT}\ns_cselect_b32 s59, 0, s59\ns_add_u32 s53, s59, s60\ns_add_u32 s57, s59, s61")
    for st in range(NSL):
        for m in range(5): dma(m)
        dma_adv()
    if mid: mid()
    A("s_and_b32 s45, s42, 1\ns_lshl_b32 s45, s45, 1\ns_lshr_b32 s46, s42, 1\ns_lshl_b32 s46, s46, 12\ns_add_u32 s46, s46, 8192")
    A("v_lshrrev_b32 v2, 4, v1\nv_bfe_u32 v3, v1, 2, 2\nv_and_b32 v4, 3, v1\nv_lshl_add_u32 v5, v2, 3, v3\nv_lshlrev_b32 v5, 7, v5\nv_lshl_add_u32 v5, v4, 3, v5")
    A("v_lshrrev_b32 v6, 1, v3\nv_and_b32 v7, 1, v2\nv_lshl_or_b32 v6, v7, 1, v6\nv_xor_b32 v6, s45, v6\nv_lshl_add_u32 v20, v6, 5, v5\nv_xor_b32 v6, 1, v6\nv_lshl_add_u32 v21, v6, 5, v5")
    A("v_and_b32 v3, 15, v1\nv_lshrrev_b32 v4, 1, v3\nv_xor_b32 v4, v4, v2\nv_lshlrev_b32 v5, 7, v3\nv_add_u32 v5, s46, v5\nv_lshl_add_u32 v22, v4, 4, v5\nv_xor_b32 v4, 4, v4\nv_lshl_add_u32 v23, v4, 4, v5")
    for r in range(96, 120): A(f"v_mov_b32 v{r}, 0")
    SET = [32, 120]
    def reads(p):
        b = SET[p]
        for ks in range(2):
            for tt in range(2):
                for hh in range(2): A(f"ds_read_b64_tr_b16 {vr(b+8*ks+4*tt+2*hh,2)}, v{24+tt} offset:{ks*4096+hh*512}")
            for rt in range(3): A(f"ds_read_b128 {vr(b+16+12*ks+4*rt,4)}, v{26+ks} offset:{2048*rt}")
    def radv():
        for j in range(4): A(f"v_add_u32 v{24+j}, s54, v{20+j}")
        A(f"s_add_u32 s54, s54, {CSLOT}\ns_cmp_ge_u32 s54, {NSL*CSLOT}\ns_cselect_b32 s54, 0, s54")
    A("s_mov_b32 s54, 0\ns_mov_b32 s50, 0")
    radv()
    nmid = 0 if mid is None else mid.nvm
    A(f"s_waitcnt vmcnt({5*(NSL-1)+nmid})\ns_barrier")
    reads(0)
    def body(p):
        b = SET[p]
        radv()
        A(f"s_waitcnt vmcnt({5*(NSL-2)}) lgkmcnt(0)\ns_barrier")
        reads(1-p)
        dq = list(range(5)); i = 0
        for ks in range(2):
            for rt in range(3):
                for tt in range(2):
                    acc = vr(96+8*rt+4*tt, 4); T = vr(b+8*ks+4*tt, 4); K = vr(b+16+12*ks+4*rt, 4)
                    if t_is_A: A(f"v_mfma_f32_16x16x32_bf16 {acc}, {T}, {K}, {acc}")
                    else: A(f"v_mfma_f32_16x16x32_bf16 {acc}, {K}, {T}, {acc}")
                    if i % 2 == 1 and dq: dma(dq.pop(0))
                    i += 1
        dma_adv()
        A("s_add_u32 s50, s50, 1")
    A(f"{L}_loop:")
    body(0)
    A(f"s_cmp_ge_u32 s50, {NS}\ns_cbranch_scc1 {L}_done")
    body(1)
    A(f"s_cmp_lt_u32 s50, {NS}\ns_cbranch_scc1 {L}_loop")
    A(f"{L}_done:\ns_waitcnt lgkmcnt(0)\ns_nop 7")

def p1_o(A):
    OP = 272; OB = 4096
    A("s_mul_i32 s45, s43, 6720\nv_lshlrev_b32 v2, 4, v0\nv_add_u32 v3, s45, v2")
    A(f"v_add_u32 v4, 4096, v3\nv_mov_b32 v5, {OOB}\nv_cmp_gt_u32 vcc, 164, v0\nv_cndmask_b32 v4, v5, v4, vcc")
    A("s_mov_b32 s46, 0")
    for i in range(16):
        A(f"buffer_load_dwordx4 {vr(96+8*i,4)}, v3, s[16:19], s46 offen\nbuffer_load_dwordx4 {vr(100+8*i,4)}, v4, s[16:19], s46 offen\ns_add_u32 s46, s46, {8*6720}")
    A("s_lshl_b32 s45, s44, 9\ns_lshl_b32 s46, s42, 7\ns_add_u32 s45, s45, s46\nv_and_b32 v6, 31, v1\nv_add_u32 v7, s45, v6\nv_mul_u32_u24 v7, 1280, v7")
    A("v_lshrrev_b32 v8, 5, v1\nv_lshl_add_u32 v7, v8, 4, v7\ns_mul_i32 s46, s43, 160\nv_add_u32 v7, s46, v7\ns_mov_b32 s46, 0")
    for b in range(4):
        for j in range(5): A(f"buffer_load_dwordx4 {vr(16+20*b+4*j,4)}, v7, s[20:23], s46 offen offset:{32*j}")
        A(f"s_add_u32 s46, s46, {32*1280}")
    A("s_waitcnt vmcnt(20)")
    for st in (8, 4, 2, 1):
        for i in range(st):
            for r in range(8): A(f"v_add_f32 v{96+8*i+r}, v{96+8*i+r}, v{96+8*(i+st)+r}")
    for r in range(4): A(f"v_cvt_pk_bf16_f32 v{104+r}, v{96+2*r}, v{96+2*r+1}")
    A("v_lshlrev_b32 v2, 3, v0\nds_write_b64 v2, v[104:105]\nds_write_b64 v2, v[106:107] offset:2048")
    A("s_waitcnt lgkmcnt(0)\ns_barrier")
    steps = [(0,0),(0,1),(0,2),(1,1),(1,2),(1,3),(1,4),(2,3),(2,4)]
    A("v_lshlrev_b32 v9, 3, v8\nv_mov_b32 v5, 3584")
    for et in range(3):
        A(f"v_add_u32 v2, {32*et}, v6\nv_mul_u32_u24 v{10+et}, 40, v2\nv_mul_u32_u24 v3, 3277, v2\nv_lshrrev_b32 v3, 16, v3\nv_mul_u32_u24 v3, 20, v3\nv_sub_u32 v{13+et}, v9, v3")
    for i,(et,j) in enumerate(steps):
        for hq in range(2):
            dq = 16*j+4*hq
            A(f"v_add_u32 v2, {dq}, v{13+et}\nv_cmp_gt_u32 vcc, 20, v2\nv_lshl_add_u32 v3, v2, 1, v{10+et}\nv_lshlrev_b32 v4, 1, v9\nv_add_u32 v4, {3200+2*dq}, v4")
            A(f"v_cndmask_b32 v3, v5, v3, vcc\nv_cndmask_b32 v4, v5, v4, vcc")
            A(f"ds_read_b64 {vr(96+4*i+2*hq,2)}, v3\nds_read_b64 {vr(132+4*i+2*hq,2)}, v4")
    A(f"s_mul_i32 s45, s42, {96*OP}\ns_add_u32 s45, s45, {OB}\nv_mul_u32_u24 v2, {OP}, v6\nv_add_u32 v2, s45, v2\nv_add_u32 v2, v2, v9")
    A(f"s_mov_b32 s62, {f2u(1e-6)}")
    A("s_waitcnt vmcnt(0) lgkmcnt(0)")
    for b in range(4):
        for et in range(3):
            N = 168+16*(et&1)*2; D = N+16; first = True
            for i,(e2,j) in enumerate(steps):
                if e2 != et: continue
                a = vr(16+20*b+4*j,4)
                A(f"v_mfma_f32_32x32x16_bf16 {vr(N,16)}, {a}, {vr(96+4*i,4)}, {'0' if first else vr(N,16)}")
                A(f"v_mfma_f32_32x32x16_bf16 {vr(D,16)}, {a}, {vr(132+4*i,4)}, {'0' if first else vr(D,16)}")
                first = False
            for r in range(16): A(f"v_add_f32 v{D+r}, s62, v{D+r}")
            for r in range(16): A(f"v_rcp_f32 v{D+r}, v{D+r}")
            for r in range(16): A(f"v_mul_f32 v{N+r}, v{N+r}, v{D+r}")
            for r in range(8): A(f"v_cvt_pk_bf16_f32 v{D+r}, v{N+2*r}, v{N+2*r+1}")
            for q in range(4): A(f"ds_write_b64 v2, {vr(D+2*q,2)} offset:{32*et*OP+64*b+16*q}")
    A(f"v_lshrrev_b32 v3, 4, v1\nv_and_b32 v4, 15, v1\nv_mul_u32_u24 v5, {OP}, v3\nv_lshl_add_u32 v5, v4, 4, v5\nv_add_u32 v5, s45, v5")
    A("s_mul_i32 s46, s43, 80\nv_add_u32 v7, s46, v3\nv_lshlrev_b32 v7, 12, v7\nv_lshl_add_u32 v7, v4, 4, v7\ns_lshl_b32 s46, s44, 10\ns_lshl_b32 s47, s42, 8\ns_add_u32 s46, s46, s47\nv_add_u32 v7, s46, v7")
    A("s_waitcnt lgkmcnt(0)")
    for i in range(20): A(f"ds_read_b128 {vr(16+4*i,4)}, v5 offset:{4*OP*i}")
    A("s_mov_b32 s46, 0")
    for i in range(20):
        A(f"s_waitcnt lgkmcnt({min(15,19-i)})\nbuffer_store_dwordx4 {vr(16+4*i,4)}, v7, s[24:27], s46 offen\ns_add_u32 s46, s46, 16384")
    A("s_sub_u32 s45, s41, 28\ns_mul_i32 s45, s45, 432\nv_lshrrev_b32 v2, 2, v0\nv_add_u32 v2, s45, v2\nv_lshlrev_b32 v2, 12, v2\nv_and_b32 v3, 3, v0\nv_lshl_add_u32 v2, v3, 7, v2\ns_lshl_b32 s45, s40, 9\nv_add_u32 v2, s45, v2\ns_mov_b32 s46, 0")
    for m in range(7): A(f"buffer_load_dword v{240+m}, v2, s[28:31], s46 offen\ns_add_u32 s46, s46, {64*4096}")
    A("s_endpgm")

def p1(A):
    k = "p1_kernel"; head(A, k)
    A("s_load_dwordx4 s[4:7], s[0:1], 32\ns_load_dwordx2 s[8:9], s[0:1], 48\ns_load_dwordx2 s[14:15], s[0:1], 80")
    ids(A)
    A("s_waitcnt lgkmcnt(0)\ns_cmp_ge_u32 s41, 28\ns_cbranch_scc1 p1_o")
    A("s_and_b32 s43, s40, 1\ns_lshl_b32 s43, s43, 2\ns_and_b32 s45, s41, 3\ns_add_u32 s43, s43, s45")
    A("s_lshr_b32 s44, s40, 1\ns_mul_i32 s44, s44, 7\ns_lshr_b32 s45, s41, 2\ns_add_u32 s44, s44, s45")
    A(f"s_cmp_ge_u32 s44, 27\ns_cbranch_scc1 {k}_end")
    srd(A, 16, 4, SZ_W1); srd(A, 20, 14, SZ_X, WS_HT); srd(A, 24, 14, SZ_UW, WS_UW); srd(A, 28, 6, 1728*2)
    A(f"s_lshl_b32 s47, s44, 7\ns_mul_i32 s48, s43, {80*4096}")
    def mid():
        A("s_and_b32 s45, s42, 1\ns_lshl_b32 s45, s45, 6\ns_add_u32 s45, s45, s47\nv_lshrrev_b32 v2, 4, v1\nv_lshlrev_b32 v2, 3, v2\nv_add_u32 v2, s45, v2")
        A("buffer_load_dwordx2 v[16:17], v2, s[28:31], 0 offen\nbuffer_load_dwordx2 v[18:19], v2, s[28:31], 0 offen offset:32")
    mid.nvm = 2
    core(A, "p1u", 32, 3456, 4096, True, mid=mid)
    c0 = -2*0.7978845608028654*LOG2E
    A(f"s_mov_b32 s62, {f2u(c0*0.044715)}\nv_mov_b32 v9, {f2u(c0)}")
    for tt in range(2):
        for h in range(2): A(f"v_lshlrev_b32 v{32+4*tt+2*h}, 16, v{16+2*tt+h}\nv_and_b32 v{33+4*tt+2*h}, 0xffff0000, v{16+2*tt+h}")
    A("s_mul_i32 s45, s43, 80\ns_lshr_b32 s46, s42, 1\ns_lshl_b32 s46, s46, 5\ns_add_u32 s45, s45, s46\nv_and_b32 v2, 15, v1\nv_add_u32 v2, s45, v2\nv_mul_u32_u24 v2, 4736, v2")
    A("v_bfe_u32 v3, v1, 4, 1\nv_lshl_add_u32 v2, v3, 5, v2\nv_lshrrev_b32 v3, 5, v1\nv_lshl_add_u32 v2, v3, 4, v2\ns_and_b32 s45, s42, 1\ns_lshl_b32 s45, s45, 6\ns_add_u32 s45, s45, s47\nv_add_u32 v2, s45, v2")
    for rt in range(3):
        a = 96+8*rt
        for r in range(8): A(f"v_add_f32 v{a+r}, v{a+r}, v{32+r}")
        for r in range(8): A(f"v_mul_f32 v{48+r}, v{a+r}, v{a+r}")
        for r in range(8): A(f"v_fma_f32 v{48+r}, v{48+r}, s62, v9")
        for r in range(8): A(f"v_mul_f32 v{48+r}, v{48+r}, v{a+r}")
        for r in range(8): A(f"v_exp_f32 v{48+r}, v{48+r}")
        for r in range(8): A(f"v_add_f32 v{48+r}, 1.0, v{48+r}")
        for r in range(8): A(f"v_rcp_f32 v{48+r}, v{48+r}")
        for r in range(8): A(f"v_mul_f32 v{a+r}, v{a+r}, v{48+r}")
        o = 60+4*rt
        for r in range(4): A(f"v_cvt_pk_bf16_f32 v{o+r}, v{a+2*r}, v{a+2*r+1}")
        A(f"v_permlane16_swap_b32 v{o}, v{o+2}\nv_permlane16_swap_b32 v{o+1}, v{o+3}")
        A(f"buffer_store_dwordx4 {vr(o,4)}, v2, s[24:27], 0 offen\nv_add_u32 v2, {16*4736}, v2")
    A("s_endpgm")
    A("p1_o:")
    A("s_lshl_b32 s45, s40, 2\ns_add_u32 s45, s45, s41\ns_sub_u32 s45, s45, 28\ns_and_b32 s43, s45, 7\ns_lshr_b32 s44, s45, 3")
    srd(A, 16, 14, SZ_KVP, WS_KVP); srd(A, 20, 14, SZ_X, WS_PQ); srd(A, 24, 14, SZ_X, WS_OT); srd(A, 28, 8, SZ_W2)
    p1_o(A)
    A(f"{k}_end:\ns_endpgm")

def p2(A):
    k = "p2_kernel"; head(A, k)
    A("s_load_dwordx2 s[4:5], s[0:1], 0\ns_load_dwordx4 s[8:11], s[0:1], 48\ns_load_dwordx2 s[12:13], s[0:1], 64\ns_load_dwordx2 s[14:15], s[0:1], 80")
    ids(A)
    A("s_lshl_b32 s43, s40, 2\ns_and_b32 s45, s41, 3\ns_add_u32 s43, s43, s45\ns_lshr_b32 s44, s41, 2")
    A("s_waitcnt lgkmcnt(0)")
    srd(A, 16, 8, SZ_W2); srd(A, 20, 14, SZ_UW, WS_UW); srd(A, 36, 14, SZ_X, WS_OT)
    srd(A, 24, 12, SZ_X); srd(A, 28, 4, SZ_X); srd(A, 32, 10, 4096)
    A(f"s_lshl_b32 s47, s43, 7\ns_mul_i32 s48, s44, {80*4736}")
    def mid():
        A("s_lshl_b32 s45, s43, 6\ns_and_b32 s46, s42, 1\ns_lshl_b32 s46, s46, 5\ns_add_u32 s45, s45, s46\nv_and_b32 v2, 15, v1\nv_add_u32 v2, s45, v2\nv_lshlrev_b32 v3, 1, v2")
        A("v_mul_u32_u24 v16, 1280, v2\nv_lshrrev_b32 v4, 4, v1\nv_lshl_add_u32 v16, v4, 3, v16\ns_mul_i32 s45, s44, 160\ns_lshr_b32 s46, s42, 1\ns_lshl_b32 s46, s46, 6\ns_add_u32 s45, s45, s46\nv_add_u32 v16, s45, v16\nv_add_u32 v17, 20480, v16")
        for rt in range(3):
            for tt in range(2): A(f"buffer_load_dwordx2 {vr(72+4*rt+2*tt,2)}, v{16+tt}, s[28:31], 0 offen offset:{32*rt}")
        A("buffer_load_ushort v84, v3, s[32:35], 0 offen\nbuffer_load_ushort v85, v3, s[32:35], 0 offen offset:32")
    mid.nvm = 8
    core(A, "p2g", 37, 4096, 4736, False, switch=27, mid=mid)
    A("v_lshlrev_b32 v84, 16, v84\nv_lshlrev_b32 v85, 16, v85")
    for rt in range(3):
        for tt in range(2):
            a = 96+8*rt+4*tt; x = 72+4*rt+2*tt; t = 32+4*(2*rt+tt)
            for h in range(2): A(f"v_lshlrev_b32 v{t+2*h}, 16, v{x+h}\nv_and_b32 v{t+2*h+1}, 0xffff0000, v{x+h}")
            for r in range(4): A(f"v_add_f32 v{a+r}, v{a+r}, v{84+tt}")
            for r in range(4): A(f"v_add_f32 v{a+r}, v{a+r}, v{t+r}")
            A(f"v_cvt_pk_bf16_f32 v{x}, v{a}, v{a+1}\nv_cvt_pk_bf16_f32 v{x+1}, v{a+2}, v{a+3}")
            A(f"buffer_store_dwordx2 {vr(x,2)}, v{16+tt}, s[24:27], 0 offen offset:{32*rt}")
    A(f"{k}_end:\ns_endpgm")

def desc(k, vg):
    return f""".p2align 6
.amdhsa_kernel {k}
  .amdhsa_next_free_vgpr {vg}
  .amdhsa_next_free_sgpr 80
  .amdhsa_accum_offset {vg}
  .amdhsa_group_segment_fixed_size 0
  .amdhsa_kernarg_size 88
  .amdhsa_user_sgpr_count 2
  .amdhsa_user_sgpr_kernarg_segment_ptr 1
  .amdhsa_system_sgpr_workgroup_id_x 1
.end_amdhsa_kernel
"""
def build():
    assert all((c*3277)>>16 == c//20 for c in range(1280)) and all((c*6554)>>16 == c//10 for c in range(1024)) and all((c*52)>>8 == c//5 for c in range(25))
    A = Asm(); p0(A); p1(A); p2(A)
    hdr = "; generated by gen.py (hand-written generator): LN+qkv | token-mix GEMM1 + attn normalise | GEMM2+out-proj\n"
    hdr += f"; @launch kernel=p0_kernel grid=(256,1,1) block=(256,1,1) lds={P0_X+4096}\n"
    hdr += f"; @launch kernel=p1_kernel grid=(256,1,1) block=(256,1,1) lds={4096+4*96*272}\n"
    hdr += f"; @launch kernel=p2_kernel grid=(256,1,1) block=(256,1,1) lds={NSL*CSLOT}\n"
    hdr += '.amdgcn_target "amdgcn-amd-amdhsa--gfx950"\n.text\n'
    return hdr + A.finish() + '.section .rodata,"a"\n' + desc("p0_kernel", 256) + desc("p1_kernel", 256) + desc("p2_kernel", 160)
if __name__ == "__main__":
    out = sys.argv[1] if len(sys.argv) > 1 else f"cdna_kernels/{NAME}.s"
    open(out, "w").write(build())
```

```python
import sys
from asmlib import Asm
NAME = "parallel_sum__linear_attn_block__mixer_token_mlp__prompt"
WS_HT, WS_PQ, WS_UW, WS_OT, WS_KVP = 0xC00000, 0x280000, 0x500000, 0x800000, 0xB00000
SZ_X = 2048*640*2; SZ_WQKV = 640*1920*2; SZ_WO = 640*640*2; SZ_W1 = 2048*1728*2; SZ_W2 = SZ_W1
SZ_UW = 640*4736; SZ_KVP = 128*6720
OOB = 0x40000000
LOG2E = 1.4426950408889634
import struct, os
OPT = dict(kv.split('=') for kv in os.environ.get('GOPT','').split(',') if kv)
def opt(k, d): return int(OPT.get(k, d))
HTP = opt('htp', 4096); P2M = opt('p2m', 2); PF0 = opt('pf0', 1)
def f2u(x): return "0x%08x" % struct.unpack("<I", struct.pack("<f", x))[0]

def srd(A, d, p, size, off=0):
    if off:
        A(f"s_add_u32 s{d}, s{p}, {off}\ns_addc_u32 s{d+1}, s{p+1}, 0")
    else:
        A(f"s_mov_b32 s{d}, s{p}\ns_mov_b32 s{d+1}, s{p+1}")
    A(f"s_mov_b32 s{d+2}, {size}\ns_mov_b32 s{d+3}, 0x00020000")
def vr(b, n): return f"v[{b}:{b+n-1}]"
def sr(b, n=4): return f"s[{b}:{b+n-1}]"
def head(A, k):
    A(f".globl {k}\n.p2align 8\n.type {k},@function\n{k}:")
    A(f"s_cmp_ge_u32 s2, 256\ns_cbranch_scc1 {k}_end")
    for i in range(6): stamp(A, i)
def ids(A):
    A("v_and_b32 v1, 63, v0\nv_lshrrev_b32 v2, 6, v0\ns_and_b32 s40, s2, 7\ns_lshr_b32 s41, s2, 3\nv_readfirstlane_b32 s42, v2")
def bf16r(A, d, s):
    A(f"v_cvt_pk_bf16_f32 v{d}, v{s}, v{s}\nv_and_b32 v{d}, 0xffff0000, v{d}")
def halfsum(A, r, t):
    A(f"v_mov_b32 v{t}, v{r}\nv_permlane32_swap_b32 v{t}, v{r}\nv_add_f32 v{r}, v{t}, v{r}")
def ln_scalars(A, sx, sxx, mb, rs, t):
    A(f"v_mul_f32 v{sx}, {f2u(1/640)}, v{sx}\nv_mul_f32 v{sxx}, {f2u(1/640)}, v{sxx}")
    A(f"v_fma_f32 v{sxx}, -v{sx}, v{sx}, v{sxx}\nv_max_f32 v{sxx}, 0, v{sxx}")
    bf16r(A, mb, sx); bf16r(A, t, sxx)
    A(f"v_add_f32 v{t}, {f2u(1e-5)}, v{t}"); bf16r(A, t, t)
    A(f"v_sqrt_f32 v{t}, v{t}"); bf16r(A, t, t)
    A(f"v_rcp_f32 v{rs}, v{t}")


STAMP = False
WS_ST = 0x1000000
def stamp(A, idx):
    if STAMP: A(f"s_memrealtime s[{64+2*idx}:{65+2*idx}]")
    if STAMP and idx in (2, 3): A(f"s_memtime s[{76+2*idx}:{77+2*idx}]")
def stamp_out(A, kid, n=6):
    if not STAMP: return
    A(f"s_memrealtime s[{64+2*(n-1)}:{65+2*(n-1)}]\ns_waitcnt lgkmcnt(0)")
    srd(A, 76, 14, 1<<20, WS_ST)
    A(f"s_add_u32 s45, s2, {kid*256}\ns_lshl_b32 s45, s45, 3\ns_add_u32 s45, s45, s42\ns_lshl_b32 s45, s45, 6\nv_mov_b32 v2, s45")
    A("s_mov_b64 exec, 1")
    A("s_sub_u32 s80, s82, s80\nv_mov_b32 v3, s80\nbuffer_store_dword v3, v2, s[76:79], 0 offen offset:24")
    for i in range(n): A(f"v_mov_b32 v3, s{64+2*i}\nbuffer_store_dword v3, v2, s[76:79], 0 offen offset:{4*i}")
def endp(A, kid):
    stamp_out(A, kid); A("s_endpgm")
def loader(A, L, NS, NSLOT, SLOT, items, adv, kid, prep, tail=None, post=None):
    n = len(items)
    def issue(first=False):
        for i, (v, sd, so, base, lo) in enumerate(items):
            if first: prep(i)
            if first and i == 0: stamp(A, 1)
            A(f"s_add_u32 m0, s{base}, {lo}\nbuffer_load_dwordx4 v{v}, {sr(sd)}, s{so} offen lds")
        A("s_add_u32 s58, s58, 1"); adv()
        A(f"s_add_u32 s59, s59, {SLOT}\ns_cmp_ge_u32 s59, {NSLOT*SLOT}\ns_cselect_b32 s59, 0, s59\ns_add_u32 s53, s59, s60\ns_add_u32 s57, s59, s61")
    A("s_mov_b32 s58, 0\ns_mov_b32 s59, 0\ns_mov_b32 s53, s60\ns_mov_b32 s57, s61")
    issue(True)
    if post:
        issue(); npo = post(); A(f"s_waitcnt vmcnt({n+npo})\ns_barrier")
    A(f"{L}_ld:"); issue(); A(f"s_waitcnt vmcnt({n})\ns_barrier\ns_cmp_lt_u32 s58, {NS}\ns_cbranch_scc1 {L}_ld")
    stamp(A, 3)
    nt = tail() if tail else 0
    A(f"s_waitcnt vmcnt({nt})\ns_barrier\ns_barrier")
    endp(A, kid)

NS0 = opt('ns0', 3)
P0_SLOT = 36864; P0_X = 147456
def bulk(A, t):
    if not PF0: return 0
    A(f"v_mul_u32_u24 v2, 4370, v{t}\nv_lshrrev_b32 v2, 16, v2\nv_mul_u32_u24 v3, 15, v2\nv_sub_u32 v3, v{t}, v3")
    A("v_mul_u32_u24 v4, 52, v3\nv_lshrrev_b32 v4, 8, v4\nv_mul_u32_u24 v4, 640, v4\nv_lshl_add_u32 v3, v3, 7, v4")
    A("s_lshl_b32 s45, s41, 4\ns_add_u32 s46, s45, 128\nv_add_u32 v2, s46, v2\nv_mul_u32_u24 v2, 3840, v2\nv_add_u32 v2, v2, v3\ns_and_b32 s46, s40, 1\ns_mul_i32 s46, s46, 640\nv_add_u32 v2, s46, v2")
    A(f"v_mov_b32 v4, {OOB}\nv_cmp_gt_u32 vcc, 240, v{t}\nv_cndmask_b32 v2, v4, v2, vcc\nbuffer_load_dword v250, v2, s[20:23], 0 offen")
    A(f"s_lshr_b32 s46, s40, 1\ns_lshl_b32 s46, s46, 9\ns_add_u32 s45, s45, s46\nv_lshrrev_b32 v2, 3, v{t}\nv_add_u32 v2, s45, v2\nv_mul_u32_u24 v2, 1280, v2\nv_and_b32 v3, 7, v{t}\nv_lshl_add_u32 v2, v3, 7, v2")
    A(f"v_cmp_gt_u32 vcc, 128, v{t}\nv_cndmask_b32 v2, v4, v2, vcc\nbuffer_load_dword v251, v2, s[16:19], 0 offen offset:256")
    return 2
def p0_gemm(A, kind):
    L = f"p0{kind}"
    A(f"s_cmp_lt_u32 s42, 4\ns_cbranch_scc1 {L}_cons\ns_sub_u32 s49, s42, 4")
    A("s_lshl_b32 s45, s43, 7\ns_lshl_b32 s46, s49, 5\ns_add_u32 s45, s45, s46\ns_mul_i32 s51, s45, 1280\ns_mov_b32 s52, s47")
    A("v_lshrrev_b32 v2, 3, v1\nv_mul_u32_u24 v2, 1280, v2\nv_lshrrev_b32 v3, 4, v1\nv_and_b32 v4, 7, v1\nv_xor_b32 v3, v3, v4\nv_lshl_add_u32 v10, v3, 4, v2")
    A("s_lshl_b32 s60, s49, 12\ns_mul_i32 s61, s49, 5120\ns_add_u32 s61, s61, 16384\ns_mul_i32 s46, s49, 320")
    def prep(i):
        if i == 0: A("s_waitcnt lgkmcnt(0)"); srd(A, 16, 4, SZ_X)
        if i == 1: A(f"v_xor_b32 v11, 64, v10\nv_add_u32 v11, {8*1280}, v11")
        if i in (2, 3): A(f"v_add_u32 v{10+i}, {16*1280}, v{8+i}")
        if i == 4:
            srd(A, 20, 6, SZ_WQKV)
            A(f"s_movk_i32 s62, {1280 if kind == 'kv' else 3520}\ns_movk_i32 s63, 1120\nv_add_u32 v5, s46, v1")
        if i >= 4:
            if i > 4: A("v_add_u32 v5, 64, v5")
            if kind == "kv":
                A(f"v_mul_u32_u24 v6, 6554, v5\nv_lshlrev_b32 v7, 4, v5\nv_lshrrev_b32 v8, 16, v6\nv_lshrrev_b32 v6, 17, v6\nv_mad_u32_u24 v7, v8, s63, v7\nv_mad_u32_u24 v{10+i}, v6, s62, v7")
            else:
                A(f"v_mul_u32_u24 v6, 3277, v5\nv_lshlrev_b32 v7, 4, v5\nv_lshrrev_b32 v6, 16, v6\nv_mad_u32_u24 v{10+i}, v6, s62, v7")
    items = [(10+m, 16, 51, 53, m*1024) for m in range(4)] + [(14+m, 20, 52, 57, m*1024) for m in range(5)]
    def post():
        A("v_and_b32 v6, 255, v0")
        return bulk(A, 6)
    def tail():
        srd(A, 28, 10, SZ_W2)
        A("s_mul_i32 s45, s41, 72\ns_sub_u32 s45, s45, 64\nv_lshrrev_b32 v2, 2, v0\nv_add_u32 v2, s45, v2\nv_lshlrev_b32 v2, 12, v2\nv_and_b32 v3, 3, v0\nv_lshl_add_u32 v2, v3, 7, v2\ns_lshl_b32 s45, s40, 9\nv_add_u32 v2, s45, v2")
        A(f"v_add_u32 v3, {64*4096}, v2\nv_mov_b32 v4, {OOB}\nv_cmp_gt_u32 vcc, 288, v0\nv_cndmask_b32 v3, v4, v3, vcc")
        A("buffer_load_dword v240, v2, s[28:31], 0 offen\nbuffer_load_dword v241, v3, s[28:31], 0 offen")
        return 2
    loader(A, L, 10, NS0, P0_SLOT, items, lambda: A(f"s_add_u32 s51, s51, 128\ns_add_u32 s52, s52, {64*3840}"), 0, prep, tail=tail, post=post)
    A(f"{L}_cons:")
    A("s_lshl_b32 s60, s42, 12")
    A("v_and_b32 v2, 31, v1\nv_lshrrev_b32 v3, 5, v1\nv_lshrrev_b32 v4, 1, v2\nv_and_b32 v4, 7, v4")
    A("v_lshlrev_b32 v5, 7, v2\nv_add_u32 v5, s60, v5")
    A("v_bfe_u32 v6, v1, 2, 2\nv_lshl_add_u32 v6, v3, 3, v6\nv_mul_u32_u24 v6, 320, v6")
    A("v_bfe_u32 v7, v1, 4, 1\nv_lshlrev_b32 v7, 5, v7\nv_and_b32 v8, 3, v1\nv_lshl_add_u32 v7, v8, 3, v7\nv_add_u32 v6, v6, v7\nv_add_u32 v6, 16384, v6")
    for jj in range(4):
        A(f"s_add_u32 s45, s42, {jj}\ns_and_b32 s45, s45, 3\ns_lshl_b32 s46, s45, 1\ns_mul_i32 s45, s45, 5120")
        A(f"v_add_u32 v7, s46, v3\nv_xor_b32 v7, v7, v4\nv_lshl_add_u32 v{20+jj}, v7, 4, v5\nv_add_u32 v{24+jj}, s45, v6")
        A(f"v_mov_b32 v{28+jj}, v{20+jj}\nv_mov_b32 v{32+jj}, v{24+jj}")
    A("s_mov_b32 s55, 0x3f803f80\ns_mov_b32 s50, 0\ns_mov_b32 s54, 0")
    for r in list(range(36, 44)) + list(range(96, 200)): A(f"v_mov_b32 v{r}, 0")
    A("v_and_b32 v2, 15, v1\nv_bfe_u32 v3, v1, 4, 1\nv_cmp_eq_u32 vcc, v2, v3\nv_mov_b32 v4, s55")
    for r in range(4): A(f"v_cndmask_b32 v{44+r}, 0, v4, vcc")
    SET = [48, 72]
    def rlist(jj):
        b = SET[jj & 1]
        R = [f"ds_read_b128 {vr(b,4)}, v{28+jj}"]
        for n in range(5):
            for hh in range(2):
                R.append(f"ds_read_b64_tr_b16 {vr(b+4+4*n+2*hh,2)}, v{32+jj} offset:{hh*1280+n*64}")
        return R
    def reads(jj):
        for r in rlist(jj): A(r)
    A("s_waitcnt lgkmcnt(0)")
    srd(A, 24, 14, *( (SZ_KVP, WS_KVP) if kind == 'kv' else (SZ_X, WS_PQ)))
    stamp(A, 1)
    A("s_barrier")
    stamp(A, 2)
    reads(0)
    A(f"{L}_loop:")
    A(f"s_add_u32 s50, s50, 1\ns_add_u32 s54, s54, {P0_SLOT}\ns_cmp_ge_u32 s54, {NS0*P0_SLOT}\ns_cselect_b32 s54, 0, s54")
    for jj in range(4):
        b = SET[jj & 1]
        FINE = opt('fine', 1)
        P0R = ([4,4,3,0,0] if jj == 2 else [3,2,2,2,2]) if FINE else [3,3,3,2,0]
        if jj == 3 or not FINE: A("s_waitcnt lgkmcnt(0)")
        if jj == 3: A("s_barrier")
        R = rlist((jj+1) & 3)
        dots = [f"v_mfma_f32_16x16x32_bf16 v[176:179], v[44:47], {vr(b,4)}, v[176:179]"]
        for r in range(2): dots.append(f"v_mfma_f32_4x4x4_16b_bf16 v[40:43], {vr(b+2*r,2)}, {vr(b+2*r,2)}, v[40:43]")

        j2 = {0: [0], 1: [1], 2: [2], 3: [3]}[jj]
        for j in j2: dots.append(f"v_add_u32 v{28+j}, s54, v{20+j}"); dots.append(f"v_add_u32 v{32+j}, s54, v{24+j}")
        per = (len(dots)+4)//5
        for n in range(5):
            acc = vr(96+16*n, 16)
            if FINE and jj < 3: A(f"s_waitcnt lgkmcnt({2*(4-n)+sum(P0R[:n])})")
            if kind == "kv": A(f"v_mfma_f32_32x32x16_bf16 {acc}, {vr(b,4)}, {vr(b+4+4*n,4)}, {acc}")
            else: A(f"v_mfma_f32_32x32x16_bf16 {acc}, {vr(b+4+4*n,4)}, {vr(b,4)}, {acc}")
            for _ in range(P0R[n]): A(R.pop(0))
            for d in dots[n*per:(n+1)*per]: A(d)
            if jj == 0: A(f"v_mfma_f32_16x16x32_bf16 {vr(180+4*n,4)}, v[44:47], {vr(b+4+4*n,4)}, {vr(180+4*n,4)}")
    A(f"s_cmp_lt_u32 s50, 10\ns_cbranch_scc1 {L}_loop\ns_waitcnt lgkmcnt(0)\ns_nop 2")
    stamp(A, 3)
    A("v_and_b32 v2, 1, v1\nv_cmp_eq_u32 vcc, 1, v2\nv_cndmask_b32 v40, v40, v41, vcc\nv_cndmask_b32 v42, v42, v43, vcc\nv_and_b32 v2, 2, v1\nv_cmp_eq_u32 vcc, 2, v2\nv_cndmask_b32 v38, v40, v42, vcc")
    halfsum(A, 38, 2)
    A(f"v_lshlrev_b32 v2, 2, v1\ns_mul_i32 s45, s42, 768\nv_add_u32 v3, s45, v2\nv_add_u32 v3, {P0_X}, v3")
    A("s_mov_b64 exec, 0xffff")
    for n in range(6):
        src = 176 if n == 5 else 180+4*n
        A(f"ds_write2_b32 v3, v{src}, v{src+1} offset0:{32*n} offset1:{32*n+16}")
    A(f"s_mov_b64 exec, -1\nv_and_b32 v2, 31, v1\nv_lshlrev_b32 v2, 2, v2\nv_add_u32 v2, {P0_X}, v2\nv_add_u32 v3, s45, v2\ns_waitcnt lgkmcnt(0)\nds_read_b32 v36, v3 offset:640\ns_waitcnt lgkmcnt(0)")
    ln_scalars(A, 36, 38, 37, 39, 4)
    A("s_waitcnt vmcnt(0) lgkmcnt(0)\ns_barrier")
    for n in range(5):
        for w in range(4): A(f"ds_read_b32 v{48+4*n+w}, v2 offset:{w*768+n*128}")
    if kind == "kv":
        A(f"v_and_b32 v4, 31, v1\nv_lshlrev_b32 v4, 2, v4\ns_lshl_b32 s45, s42, 7\nv_add_u32 v4, s45, v4\nv_add_u32 v4, {P0_X+3072}, v4\nds_write_b32 v4, v39")
    A("v_lshrrev_b32 v5, 16, v37\nv_or_b32 v72, v5, v37\nv_xor_b32 v72, 0x80008000, v72\nv_mov_b32 v73, 0\nv_mov_b32 v74, 0\nv_mov_b32 v75, 0")
    A("v_cmp_gt_u32 vcc, 32, v1")
    A("s_waitcnt lgkmcnt(0)")
    if kind == "kv":
        A(f"v_lshrrev_b32 v4, 5, v1\nv_lshlrev_b32 v4, 4, v4\nv_add_u32 v4, s45, v4\nv_add_u32 v4, {P0_X+3072}, v4")
        for q in range(4): A(f"ds_read_b128 {vr(176+4*q,4)}, v4 offset:{32*q}")
    for n in range(5):
        b = 48+4*n
        A(f"v_add_f32 v{b}, v{b}, v{b+1}\nv_add_f32 v{b+2}, v{b+2}, v{b+3}\nv_add_f32 v{b}, v{b}, v{b+2}")
        bf16r(A, b+1, b)
        A(f"v_sub_f32 v{b+2}, v{b}, v{b+1}\nv_cvt_pk_bf16_f32 v{b}, v{b+1}, v{b+2}\nv_cndmask_b32 v{b}, 0, v{b}, vcc")
        A(f"v_mov_b32 v{b+1}, 0\nv_mov_b32 v{b+2}, 0\nv_mov_b32 v{b+3}, 0")
    for n in range(5):
        acc = vr(96+16*n, 16)
        if kind == "kv": A(f"v_mfma_f32_32x32x16_bf16 {acc}, v[72:75], {vr(48+4*n,4)}, {acc}")
        else: A(f"v_mfma_f32_32x32x16_bf16 {acc}, {vr(48+4*n,4)}, v[72:75], {acc}")
    A(f"s_mov_b32 s62, {f2u(1e-6)}\ns_mov_b32 s63, {f2u(LOG2E)}\nv_mov_b32 v9, s62")
    def phi(r, rsreg, t, keep=None):
        if keep is not None: A(f"v_mul_f32 v{keep}, v{r}, v{rsreg}")
        A(f"v_fma_f32 v{r}, v{r}, v{rsreg}, v9\nv_mul_f32 v{t}, s63, v{r}\nv_exp_f32 v{t}, v{t} clamp\nv_max_f32 v{r}, s62, v{r}\nv_add_f32 v{r}, v{r}, v{t}")
    if kind == "q":
        A("s_lshl_b32 s45, s43, 7\ns_lshl_b32 s46, s42, 5\ns_add_u32 s45, s45, s46\nv_and_b32 v2, 31, v1\nv_add_u32 v2, s45, v2\nv_mul_u32_u24 v2, 1280, v2")
        A("v_lshrrev_b32 v3, 5, v1\nv_lshl_add_u32 v2, v3, 4, v2\nv_add_u32 v2, s47, v2")
        for n in range(5):
            for qq in range(2):
                a = 96+16*n+8*qq; o = 176+8*n+4*qq
                for r in range(8): phi(a+r, 39, 4+(r&3))
                for r in range(4): A(f"v_cvt_pk_bf16_f32 v{o+r}, v{a+2*r}, v{a+2*r+1}")
                A(f"v_permlane32_swap_b32 v{o}, v{o+2}\nv_permlane32_swap_b32 v{o+1}, v{o+3}")
                A(f"buffer_store_dwordx4 {vr(o,4)}, v2, s[24:27], 0 offen offset:{64*n+32*qq}")
        endp(A, 0)
        return
    A("s_waitcnt lgkmcnt(0)")
    A("v_and_b32 v2, 31, v1\nv_cmp_gt_u32 vcc, 16, v2")
    for n in range(5):
        for r in range(16):
            a = 96+16*n+r
            if n < 2: phi(a, 176+r, 4+(r&3))
            elif n == 2:
                phi(a, 176+r, 4+(r&1), keep=6+(r&1)); A(f"v_cndmask_b32 v{a}, v{6+(r&1)}, v{a}, vcc")
            else: A(f"v_mul_f32 v{a}, v{a}, v{176+r}")
        for r in range(8): A(f"v_cvt_pk_bf16_f32 v{48+8*n+r}, v{96+16*n+2*r}, v{96+16*n+2*r+1}")
    for r in range(4): A(f"v_mov_b32 v{88+r}, s55")
    prods = [(0,2),(0,3),(1,3),(1,4),(2,4)]
    for pi,(dt,et) in enumerate(prods):
        acc = vr(96+16*pi,16)
        A(f"v_mfma_f32_32x32x16_bf16 {acc}, {vr(48+8*dt,4)}, {vr(48+8*et,4)}, 0")
        A(f"v_mfma_f32_32x32x16_bf16 {acc}, {vr(52+8*dt,4)}, {vr(52+8*et,4)}, {acc}")
    for dt in range(3):
        acc = vr(176+16*dt,16)
        A(f"v_mfma_f32_32x32x16_bf16 {acc}, {vr(48+8*dt,4)}, v[88:91], 0")
        A(f"v_mfma_f32_32x32x16_bf16 {acc}, {vr(52+8*dt,4)}, v[88:91], {acc}")
    A("s_mul_i32 s45, s42, 7168\nv_lshrrev_b32 v3, 5, v1\nv_lshlrev_b32 v3, 2, v3\nv_mov_b32 v8, s45\nv_add_u32 v8, 6912, v8")
    for et in (2,3,4):
        A(f"v_add_u32 v4, {32*et-80}, v2")
        A(f"v_mul_i32_i24 v{10+et}, 80, v4\nv_add_u32 v{10+et}, s45, v{10+et}")
        A(f"v_mul_i32_i24 v5, 3277, v4\nv_ashrrev_i32 v5, 16, v5\nv_mul_i32_i24 v5, 20, v5\nv_sub_u32 v{16+et}, v3, v5")
    for pi,(dt,et) in enumerate(prods):
        for q in range(4):
            t = 24+(q&1)*2
            A(f"v_add_u32 v{t}, {32*dt+8*q}, v{16+et}\nv_cmp_gt_u32 vcc, 20, v{t}\nv_lshl_add_u32 v{t+1}, v{t}, 2, v{10+et}\nv_cndmask_b32 v{t+1}, v8, v{t+1}, vcc")
            A(f"ds_write_b128 v{t+1}, {vr(96+16*pi+4*q,4)}")
    A("v_lshlrev_b32 v4, 2, v3\nv_add_u32 v4, s45, v4")
    A("s_mov_b32 exec_lo, 1\ns_mov_b32 exec_hi, 1")
    for dt in range(3):
        for q in range(4):
            if 32*dt+8*q < 80: A(f"ds_write_b128 v4, {vr(176+16*dt+4*q,4)} offset:{6400+(32*dt+8*q)*4}")
    A("s_mov_b64 exec, -1\ns_waitcnt lgkmcnt(0)\ns_barrier")
    A("v_lshlrev_b32 v2, 4, v0")
    for h in range(2):
        for w in range(4): A(f"ds_read_b128 {vr(48+16*h+4*w,4)}, v2 offset:{w*7168+h*4096}")
    A("s_lshl_b32 s45, s43, 3\ns_add_u32 s45, s45, s44\ns_mul_i32 s45, s45, 6720\nv_add_u32 v3, s45, v2")
    A(f"v_add_u32 v4, 4096, v3\nv_mov_b32 v5, {OOB}\nv_cmp_gt_u32 vcc, 164, v0\nv_cndmask_b32 v4, v5, v4, vcc")
    A("s_waitcnt lgkmcnt(0)")
    for h in range(2):
        b = 48+16*h
        for r in range(4): A(f"v_add_f32 v{b+r}, v{b+r}, v{b+4+r}\nv_add_f32 v{b+8+r}, v{b+8+r}, v{b+12+r}\nv_add_f32 v{b+r}, v{b+r}, v{b+8+r}")
        A(f"buffer_store_dwordx4 {vr(b,4)}, v{3+h}, s[24:27], 0 offen")
    endp(A, 0)

def p0_aux(A):
    HP = 1312; WOL = 49152
    A("s_cmp_lt_u32 s42, 4\ns_cbranch_scc1 p0_aux2\nv_and_b32 v6, 255, v0")
    bulk(A, 6)
    A("s_lshl_b32 s50, s44, 8\ns_sub_u32 s50, s50, 256\nv_add_u32 v5, s50, v0\nv_mul_u32_u24 v5, 3456, v5\ns_lshr_b32 s50, s40, 1\ns_mul_i32 s50, s50, 896\nv_add_u32 v5, s50, v5")
    A("s_barrier")
    if opt('w1late', 1): A("s_barrier")
    for m in range(7): A(f"buffer_load_dword v{240+m}, v5, s[36:39], 0 offen offset:{128*m}")
    A("s_endpgm\np0_aux2:")
    A("s_lshl_b32 s45, s43, 5\ns_lshl_b32 s46, s42, 3\ns_add_u32 s45, s45, s46")
    A("v_lshrrev_b32 v2, 3, v1\nv_add_u32 v3, s45, v2\nv_mul_u32_u24 v3, 1280, v3\nv_and_b32 v4, 7, v1\nv_lshl_add_u32 v3, v4, 4, v3")
    for i in range(10): A(f"buffer_load_dwordx4 {vr(16+4*i,4)}, v3, s[16:19], 0 offen offset:{128*i}")
    A("s_lshr_b32 s47, s43, 3\ns_and_b32 s48, s43, 7\ns_mul_i32 s49, s47, 102400\ns_mul_i32 s50, s48, 160\ns_add_u32 s49, s49, s50")
    for i in range(4):
        A(f"s_add_u32 s50, s42, {4*i}\ns_lshl_b32 s51, s50, 6\nv_add_u32 v5, s51, v1\nv_mul_u32_u24 v6, 6554, v5\nv_lshrrev_b32 v6, 16, v6")
        A(f"v_mul_u32_u24 v7, 10, v6\nv_sub_u32 v7, v5, v7\nv_mul_u32_u24 v6, 1280, v6\nv_lshl_add_u32 v6, v7, 4, v6\nv_add_u32 v6, s49, v6")
        A(f"v_mov_b32 v7, {OOB}\nv_cmp_gt_u32 vcc, 800, v5\nv_cndmask_b32 v6, v7, v6, vcc")
        A(f"s_lshl_b32 s50, s50, 10\ns_add_u32 m0, s50, {WOL}\nbuffer_load_dwordx4 v6, s[28:31], 0 offen lds")
    A("s_mov_b32 s55, 0x3f803f80")
    def red8(r, t):
        A(f"v_add_f32_dpp v{r}, v{r}, v{r} quad_perm:[1,0,3,2] row_mask:0xf bank_mask:0xf")
        A(f"v_add_f32_dpp v{r}, v{r}, v{r} quad_perm:[2,3,0,1] row_mask:0xf bank_mask:0xf")
        A(f"v_add_f32_dpp v{r}, v{r}, v{r} row_half_mirror row_mask:0xf bank_mask:0xf")
    A("s_waitcnt vmcnt(4)\ns_barrier")
    stamp(A, 2)
    for ln in range(2):
        for r in range(8, 12): A(f"v_mov_b32 v{r}, 0")
        for r in range(40):
            A(f"v_dot2c_f32_bf16 v{8+(r&1)}, s55, v{16+r}\nv_dot2c_f32_bf16 v{10+(r&1)}, v{16+r}, v{16+r}")
        A("v_add_f32 v8, v8, v9\nv_add_f32 v10, v10, v11")
        red8(8, 9); red8(10, 11)
        ln_scalars(A, 8, 10, 14, 12, 9)
        A("v_mul_f32 v14, v14, v12\nv_sub_f32 v14, 0, v14\nv_mov_b32 v13, v12\nv_mov_b32 v15, v14")
        for r in range(40):
            t = 60+2*(r&7)
            A(f"v_lshlrev_b32 v{t}, 16, v{16+r}\nv_and_b32 v{t+1}, 0xffff0000, v{16+r}")
            A(f"v_pk_fma_f32 {vr(t,2)}, {vr(t,2)}, v[12:13], v[14:15]\nv_cvt_pk_bf16_f32 v{16+r}, v{t}, v{t+1}")
    A(f"v_add_u32 v3, s46, v2\nv_mul_u32_u24 v3, {HP}, v3\nv_lshl_add_u32 v3, v4, 4, v3")
    for i in range(10): A(f"ds_write_b128 v3, {vr(16+4*i,4)} offset:{128*i}")
    stamp(A, 3)
    A("s_waitcnt vmcnt(0) lgkmcnt(0)\ns_barrier")
    A(f"v_lshrrev_b32 v2, 4, v1\nv_bfe_u32 v3, v1, 2, 2\nv_and_b32 v4, 3, v1\nv_lshl_add_u32 v5, v2, 3, v3\nv_mul_u32_u24 v5, {HP}, v5\nv_lshl_add_u32 v5, v4, 3, v5")
    A("s_lshl_b32 s50, s42, 5\nv_add_u32 v5, s50, v5")
    for i in range(10):
        for hh in range(2): A(f"ds_read_b64_tr_b16 {vr(16+4*i+2*hh,2)}, v5 offset:{128*i+hh*4*HP}")
    A("v_and_b32 v6, 15, v1\ns_lshl_b32 s50, s42, 4\nv_add_u32 v7, s50, v6\nv_mul_u32_u24 v7, "+str(HTP)+", v7\nv_lshl_add_u32 v7, v2, 4, v7\ns_lshl_b32 s50, s43, 6\nv_add_u32 v7, s50, v7")
    A(f"v_lshl_add_u32 v8, v2, 2, v3\nv_mul_u32_u24 v8, 160, v8\nv_lshl_add_u32 v8, v4, 3, v8\nv_add_u32 v8, {WOL}, v8")
    A("v_mul_u32_u24 v9, 4736, v6\nv_lshl_add_u32 v9, v2, 3, v9\ns_mul_i32 s49, s48, 378880\ns_mul_i32 s50, s47, 160\ns_add_u32 s49, s49, s50\ns_add_u32 s49, s49, 3456\nv_add_u32 v9, s49, v9")
    for m in range(7):
        A(f"s_add_u32 s50, s42, {4*m}\ns_min_u32 s50, s50, 24\ns_mul_i32 s51, s50, 52\ns_lshr_b32 s51, s51, 8\ns_mul_i32 s52, s51, 5\ns_sub_u32 s52, s50, s52")
        A(f"s_mul_i32 s53, s52, 2560\ns_lshl_b32 s54, s51, 5\ns_add_u32 s53, s53, s54\nv_add_u32 v10, s53, v8\nds_read_b64_tr_b16 {vr(60+2*m,2)}, v10")
        A(f"s_mul_i32 s53, s51, {16*4736}\ns_lshl_b32 s54, s52, 5\ns_add_u32 s53, s53, s54\nv_add_u32 v{80+m}, s53, v9")
    A("s_waitcnt lgkmcnt(0)")
    for i in range(10):
        A(f"buffer_store_dwordx4 {vr(16+4*i,4)}, v7, s[24:27], 0 offen\nv_add_u32 v7, {64*HTP}, v7")
    for m in range(7): A(f"buffer_store_dwordx2 {vr(60+2*m,2)}, v{80+m}, s[32:35], 0 offen")
    endp(A, 0)

def p0(A):
    k = "p0_kernel"; head(A, k)
    A("s_load_dwordx4 s[4:7], s[0:1], 0\ns_load_dwordx2 s[8:9], s[0:1], 16\ns_load_dwordx2 s[12:13], s[0:1], 32\ns_load_dwordx2 s[14:15], s[0:1], 80\ns_load_dwordx2 s[10:11], s[0:1], 48")
    ids(A)
    A("s_lshr_b32 s43, s40, 1\ns_lshl_b32 s43, s43, 2\ns_and_b32 s45, s41, 3\ns_add_u32 s43, s43, s45")
    A("s_cmp_ge_u32 s41, 24\ns_cbranch_scc1 p0_aux\ns_cmp_ge_u32 s41, 16\ns_cbranch_scc1 p0_q")
    A("s_and_b32 s44, s40, 1\ns_lshl_b32 s44, s44, 2\ns_lshr_b32 s45, s41, 2\ns_add_u32 s44, s44, s45\ns_mul_i32 s47, s44, 160\ns_add_u32 s47, s47, 1280")
    p0_gemm(A, "kv")
    A("p0_q:")
    A("s_and_b32 s44, s40, 1\ns_lshl_b32 s44, s44, 1\ns_sub_u32 s45, s41, 16\ns_lshr_b32 s45, s45, 2\ns_add_u32 s44, s44, s45\ns_mul_i32 s47, s44, 320")
    p0_gemm(A, "q")
    A("p0_aux:")
    A("s_sub_u32 s44, s41, 24\ns_lshl_b32 s43, s40, 3\ns_add_u32 s43, s43, s44")
    A("s_waitcnt lgkmcnt(0)")
    srd(A, 16, 4, SZ_X); srd(A, 20, 6, SZ_WQKV); srd(A, 24, 14, 640*HTP, WS_HT); srd(A, 28, 8, SZ_WO); srd(A, 32, 14, SZ_UW, WS_UW); srd(A, 36, 12, SZ_W1)
    p0_aux(A)
    A(f"{k}_end:\ns_endpgm")

NSL = opt('nsl', 3); SUB = 18432; CSLOT = 2*SUB
def core(A, L, NK, tpitch, kpitch, t_is_A, kid, srds, switch=None, mid=None, tail=None):
    NS = (NK+1)//2
    A(f"s_cmp_lt_u32 s42, 4\ns_cbranch_scc1 {L}_cons\ns_sub_u32 s49, s42, 4")
    A("v_lshrrev_b32 v2, 3, v1\nv_and_b32 v4, 7, v1\nv_bfe_u32 v3, v1, 4, 1\nv_lshlrev_b32 v3, 1, v3")
    A(f"v_mul_u32_u24 v5, {tpitch}, v2\nv_add_u32 v5, s47, v5\nv_xor_b32 v6, v3, v4\nv_lshl_add_u32 v10, v6, 4, v5")
    A(f"v_lshrrev_b32 v3, 4, v1\nv_xor_b32 v3, v3, v4\nv_mul_u32_u24 v7, {kpitch}, v2\nv_add_u32 v7, s48, v7\nv_lshl_add_u32 v18, v3, 4, v7")
    A(f"s_mul_i32 s60, s49, {SUB}\ns_mov_b32 s61, s60\ns_mul_i32 s51, s49, {64*tpitch}\ns_lshl_b32 s52, s49, 7\ns_mov_b32 s56, s49")
    def prep(i):
        v = items[i][0]
        if i == 0: A("s_waitcnt lgkmcnt(0)"); srds[0]()
        if i == 1: srds[1]()
        if i == 17 and len(srds) > 2: srds[2]()
        if v == 11: A(f"v_xor_b32 v6, 4, v6\nv_lshl_add_u32 v11, v6, 4, v5\nv_add_u32 v11, {8*tpitch}, v11")
        elif v == 19: A(f"v_xor_b32 v3, 4, v3\nv_lshl_add_u32 v19, v3, 4, v7\nv_add_u32 v19, {8*kpitch}, v19")
        elif 12 <= v < 18: A(f"v_add_u32 v{v}, {16*tpitch}, v{v-2}")
        elif v >= 20: A(f"v_add_u32 v{v}, {16*kpitch}, v{v-2}")
    def adv():
        A(f"s_add_u32 s51, s51, {128*tpitch}\ns_add_u32 s52, s52, 256\ns_add_u32 s56, s56, 2")
        if switch is not None:
            A(f"s_sub_u32 s45, s56, {switch}\ns_mul_i32 s46, s45, {64*tpitch}\ns_cmp_lt_u32 s45, 2\ns_cselect_b32 s16, s36, s16\ns_cselect_b32 s17, s37, s17\ns_cselect_b32 s18, s38, s18\ns_cselect_b32 s51, s46, s51")
        if NK & 1: A(f"s_cmp_ge_u32 s56, {NK}\ns_cselect_b32 s52, {OOB}, s52")
    items = []
    for m in range(10):
        if m < 8: items.append((10+m, 16, 51, 53, m*1024))
        items.append((18+m, 20, 52, 53, 8192+m*1024))
    loader(A, L, NS, NSL, CSLOT, items, adv, kid, prep, tail=tail)
    A(f"{L}_cons:")
    if mid: mid()
    A(f"s_and_b32 s45, s42, 1\ns_lshl_b32 s45, s45, 1\ns_lshr_b32 s46, s42, 1\ns_or_b32 s45, s45, s46\ns_mul_i32 s46, s46, {SUB}")
    A("v_lshrrev_b32 v2, 4, v1\nv_bfe_u32 v3, v1, 2, 2\nv_and_b32 v4, 3, v1\nv_lshl_add_u32 v5, v2, 3, v3\nv_lshlrev_b32 v5, 7, v5\nv_lshl_add_u32 v5, v4, 3, v5\nv_add_u32 v5, s46, v5")
    A("v_lshrrev_b32 v6, 1, v3\nv_and_b32 v7, 1, v2\nv_lshl_or_b32 v6, v7, 1, v6\nv_xor_b32 v6, s45, v6\nv_lshl_add_u32 v20, v6, 5, v5\nv_xor_b32 v6, 1, v6\nv_lshl_add_u32 v21, v6, 5, v5")
    A("s_add_u32 s46, s46, 8192\nv_and_b32 v3, 15, v1\nv_lshrrev_b32 v4, 1, v3\nv_xor_b32 v4, v4, v2\nv_lshlrev_b32 v5, 7, v3\nv_add_u32 v5, s46, v5\nv_lshl_add_u32 v22, v4, 4, v5\nv_xor_b32 v4, 4, v4\nv_lshl_add_u32 v23, v4, 4, v5")
    for r in range(96, 136): A(f"v_mov_b32 v{r}, 0")
    SET = [136, 192]
    def readlist(p):
        b = SET[p]; R = []
        for ks in range(2):
            for tt in range(2):
                for hh in range(2): R.append(f"ds_read_b64_tr_b16 {vr(b+8*ks+4*tt+2*hh,2)}, v{24+tt} offset:{ks*4096+hh*512}")
            for rt in range(5): R.append(f"ds_read_b128 {vr(b+16+20*ks+4*rt,4)}, v{26+ks} offset:{2048*rt}")
        return R
    def radv():
        for j in range(4): A(f"v_add_u32 v{24+j}, s54, v{20+j}")
        A(f"s_add_u32 s54, s54, {CSLOT}\ns_cmp_ge_u32 s54, {NSL*CSLOT}\ns_cselect_b32 s54, 0, s54")
    A("s_mov_b32 s54, 0\ns_mov_b32 s50, 0")
    radv()
    stamp(A, 1)
    A("s_barrier")
    stamp(A, 2)
    for r in readlist(0): A(r)
    radv()
    def body(p):
        b = SET[p]
        A(f"s_waitcnt lgkmcnt(0)\ns_barrier")
        R = readlist(1-p); i = 0
        for ks in range(2):
            for rt in range(5):
                for tt in range(2):
                    acc = vr(96+20*tt+4*rt, 4); T = vr(b+8*ks+4*tt, 4); K = vr(b+16+20*ks+4*rt, 4)
                    if t_is_A: A(f"v_mfma_f32_16x16x32_bf16 {acc}, {T}, {K}, {acc}")
                    else: A(f"v_mfma_f32_16x16x32_bf16 {acc}, {K}, {T}, {acc}")
                    for _ in range(RPM[i]):
                        if R: A(R.pop(0))
                    if i == 16: radv()
                    i += 1
        assert not R
        A("s_add_u32 s50, s50, 1")
    A(f"{L}_loop:")
    body(0)
    A(f"s_cmp_ge_u32 s50, {NS}\ns_cbranch_scc1 {L}_done")
    body(1)
    A(f"s_cmp_lt_u32 s50, {NS}\ns_cbranch_scc1 {L}_loop")
    A(f"{L}_done:\ns_waitcnt vmcnt(0) lgkmcnt(0)")
    stamp(A, 3)
    A("s_barrier\nv_lshlrev_b32 v2, 4, v1\ns_mul_i32 s45, s42, 5120\nv_add_u32 v3, s45, v2\ns_xor_b32 s46, s42, 2\ns_mul_i32 s46, s46, 5120\nv_add_u32 v4, s46, v2")
    for rt in range(5): A(f"ds_write_b128 v3, {vr(116+4*rt,4)} offset:{1024*rt}")
    A("s_waitcnt lgkmcnt(0)\ns_barrier")
    for rt in range(5): A(f"ds_read_b128 {vr(136+4*rt,4)}, v4 offset:{1024*rt}")
    A("s_waitcnt lgkmcnt(0)")
    for r in range(20): A(f"v_add_f32 v{96+r}, v{96+r}, v{136+r}")
RPM = [2,1,2,1,2,1,2,1,2,1,2,1,0,0,0,0,0,0,0,0]

def p1_o(A):
    OP = 272; OB = 4096
    A("s_cmp_lt_u32 s42, 4\ns_cbranch_scc1 p1_o2")
    A("s_endpgm\np1_o2:")
    A("s_mul_i32 s45, s43, 6720\nv_lshlrev_b32 v2, 4, v0\nv_add_u32 v3, s45, v2")
    A(f"v_add_u32 v4, 4096, v3\nv_mov_b32 v5, {OOB}\nv_cmp_gt_u32 vcc, 164, v0\nv_cndmask_b32 v4, v5, v4, vcc")
    A("s_mov_b32 s46, 0")
    for i in range(16):
        A(f"buffer_load_dwordx4 {vr(96+8*i,4)}, v3, s[16:19], s46 offen\nbuffer_load_dwordx4 {vr(100+8*i,4)}, v4, s[16:19], s46 offen\ns_add_u32 s46, s46, {8*6720}")
    A("s_lshl_b32 s45, s44, 9\ns_lshl_b32 s46, s42, 7\ns_add_u32 s45, s45, s46\nv_and_b32 v6, 31, v1\nv_add_u32 v7, s45, v6\nv_mul_u32_u24 v7, 1280, v7")
    A("v_lshrrev_b32 v8, 5, v1\nv_lshl_add_u32 v7, v8, 4, v7\ns_mul_i32 s46, s43, 160\nv_add_u32 v7, s46, v7\ns_mov_b32 s46, 0")
    for b in range(4):
        for j in range(5): A(f"buffer_load_dwordx4 {vr(16+20*b+4*j,4)}, v7, s[20:23], s46 offen offset:{32*j}")
        A(f"s_add_u32 s46, s46, {32*1280}")
    stamp(A, 1)
    A("s_waitcnt vmcnt(20)")
    stamp(A, 2)
    for st in (8, 4, 2, 1):
        for i in range(st):
            for r in range(8): A(f"v_add_f32 v{96+8*i+r}, v{96+8*i+r}, v{96+8*(i+st)+r}")
    for r in range(4): A(f"v_cvt_pk_bf16_f32 v{104+r}, v{96+2*r}, v{96+2*r+1}")
    A("v_lshlrev_b32 v2, 3, v0\nds_write_b64 v2, v[104:105]\nds_write_b64 v2, v[106:107] offset:2048")
    A("s_waitcnt lgkmcnt(0)\ns_barrier")
    steps = [(0,0),(0,1),(0,2),(1,1),(1,2),(1,3),(1,4),(2,3),(2,4)]
    A("v_lshlrev_b32 v9, 3, v8\nv_mov_b32 v5, 3584")
    for et in range(3):
        A(f"v_add_u32 v2, {32*et}, v6\nv_mul_u32_u24 v{10+et}, 40, v2\nv_mul_u32_u24 v3, 3277, v2\nv_lshrrev_b32 v3, 16, v3\nv_mul_u32_u24 v3, 20, v3\nv_sub_u32 v{13+et}, v9, v3")
    for i,(et,j) in enumerate(steps):
        for hq in range(2):
            dq = 16*j+4*hq
            A(f"v_add_u32 v2, {dq}, v{13+et}\nv_cmp_gt_u32 vcc, 20, v2\nv_lshl_add_u32 v3, v2, 1, v{10+et}\nv_lshlrev_b32 v4, 1, v9\nv_add_u32 v4, {3200+2*dq}, v4")
            A(f"v_cndmask_b32 v3, v5, v3, vcc\nv_cndmask_b32 v4, v5, v4, vcc")
            A(f"ds_read_b64 {vr(96+4*i+2*hq,2)}, v3\nds_read_b64 {vr(132+4*i+2*hq,2)}, v4")
    A(f"s_mul_i32 s45, s42, {96*OP}\ns_add_u32 s45, s45, {OB}\nv_mul_u32_u24 v2, {OP}, v6\nv_add_u32 v2, s45, v2\nv_add_u32 v2, v2, v9")
    A(f"s_mov_b32 s62, {f2u(1e-6)}")
    A("s_waitcnt vmcnt(0) lgkmcnt(0)")
    stamp(A, 3)
    for b in range(4):
        for et in range(3):
            N = 168+16*(et&1)*2; D = N+16; first = True
            for i,(e2,j) in enumerate(steps):
                if e2 != et: continue
                a = vr(16+20*b+4*j,4)
                A(f"v_mfma_f32_32x32x16_bf16 {vr(N,16)}, {a}, {vr(96+4*i,4)}, {'0' if first else vr(N,16)}")
                A(f"v_mfma_f32_32x32x16_bf16 {vr(D,16)}, {a}, {vr(132+4*i,4)}, {'0' if first else vr(D,16)}")
                first = False
            for r in range(16): A(f"v_add_f32 v{D+r}, s62, v{D+r}")
            for r in range(16): A(f"v_rcp_f32 v{D+r}, v{D+r}")
            for r in range(16): A(f"v_mul_f32 v{N+r}, v{N+r}, v{D+r}")
            for r in range(8): A(f"v_cvt_pk_bf16_f32 v{D+r}, v{N+2*r}, v{N+2*r+1}")
            for q in range(4): A(f"ds_write_b64 v2, {vr(D+2*q,2)} offset:{32*et*OP+64*b+16*q}")
    A(f"v_lshrrev_b32 v3, 4, v1\nv_and_b32 v4, 15, v1\nv_mul_u32_u24 v5, {OP}, v3\nv_lshl_add_u32 v5, v4, 4, v5\nv_add_u32 v5, s45, v5")
    A("s_mul_i32 s46, s43, 80\nv_add_u32 v7, s46, v3\nv_lshlrev_b32 v7, 12, v7\nv_lshl_add_u32 v7, v4, 4, v7\ns_lshl_b32 s46, s44, 10\ns_lshl_b32 s47, s42, 8\ns_add_u32 s46, s46, s47\nv_add_u32 v7, s46, v7")
    A("s_waitcnt lgkmcnt(0)")
    stamp(A, 4)
    if STAMP: A("s_waitcnt lgkmcnt(0)")
    for i in range(20): A(f"ds_read_b128 {vr(16+4*i,4)}, v5 offset:{4*OP*i}")
    A("s_mov_b32 s46, 0")
    for i in range(20):
        A(f"s_waitcnt lgkmcnt({min(15,19-i)})\nbuffer_store_dwordx4 {vr(16+4*i,4)}, v7, s[24:27], s46 offen\ns_add_u32 s46, s46, 16384")
    endp(A, 1)

def p1(A):
    k = "p1_kernel"; head(A, k)
    A("s_load_dwordx4 s[4:7], s[0:1], 32\ns_load_dwordx2 s[8:9], s[0:1], 48\ns_load_dwordx2 s[14:15], s[0:1], 80")
    ids(A)
    A("s_cmp_ge_u32 s41, 28\ns_cbranch_scc1 p1_o")
    A("s_and_b32 s43, s40, 1\ns_lshl_b32 s43, s43, 2\ns_and_b32 s45, s41, 3\ns_add_u32 s43, s43, s45")
    A("s_lshr_b32 s44, s40, 1\ns_mul_i32 s44, s44, 7\ns_lshr_b32 s45, s41, 2\ns_add_u32 s44, s44, s45")
    A(f"s_cmp_ge_u32 s44, 27\ns_cbranch_scc1 {k}_end")
    A(f"s_lshl_b32 s47, s44, 7\ns_mul_i32 s48, s43, {80*HTP}")
    def mid():
        A("s_and_b32 s45, s42, 1\ns_lshl_b32 s45, s45, 6\ns_lshr_b32 s46, s42, 1\ns_lshl_b32 s46, s46, 5\ns_add_u32 s45, s45, s46\ns_add_u32 s45, s45, s47\nv_lshrrev_b32 v2, 4, v1\nv_lshlrev_b32 v2, 3, v2\nv_add_u32 v2, s45, v2")
        A("s_waitcnt lgkmcnt(0)"); srd(A, 24, 14, SZ_UW, WS_UW); srd(A, 28, 6, 1728*2)
        A("buffer_load_dwordx2 v[18:19], v2, s[28:31], 0 offen")
        A("s_mul_i32 s45, s43, 80\nv_and_b32 v3, 15, v1\nv_add_u32 v3, s45, v3\nv_mul_u32_u24 v3, 4736, v3\nv_add_u32 v16, v2, v3")
    def tail():
        if not opt('pf1', 1): return 0
        A("s_mul_i32 s45, s41, 72\ns_sub_u32 s45, s45, 64\nv_lshrrev_b32 v2, 2, v0\nv_add_u32 v2, s45, v2\nv_lshlrev_b32 v2, 12, v2\nv_and_b32 v3, 3, v0\nv_lshl_add_u32 v2, v3, 7, v2\ns_lshl_b32 s45, s40, 9\nv_add_u32 v2, s45, v2")
        A(f"v_add_u32 v5, {32*4096}, v2\nv_add_u32 v3, {64*4096}, v2\nv_mov_b32 v4, {OOB}\nv_cmp_gt_u32 vcc, 288, v0\nv_cndmask_b32 v3, v4, v3, vcc")
        A("buffer_load_dword v240, v2, s[32:35], 0 offen\nbuffer_load_dword v241, v5, s[32:35], 0 offen\nbuffer_load_dword v242, v3, s[32:35], 0 offen")
        return 3
    core(A, "p1u", 32, 3456, HTP, True, 1, [lambda: srd(A, 16, 4, SZ_W1), lambda: srd(A, 20, 14, 640*HTP, WS_HT), lambda: srd(A, 32, 8, SZ_W2)], mid=mid, tail=tail)
    c0 = -2*0.7978845608028654*LOG2E
    A(f"s_mov_b32 s62, {f2u(c0*0.044715)}\nv_mov_b32 v9, {f2u(c0)}\ns_mov_b32 s46, 0")
    for h in range(2): A(f"v_lshlrev_b32 v{32+2*h}, 16, v{18+h}\nv_and_b32 v{33+2*h}, 0xffff0000, v{18+h}")
    for r in range(20): A(f"v_add_f32 v{96+r}, v{96+r}, v{32+(r&3)}")
    for r in range(20): A(f"v_mul_f32 v{48+r}, v{96+r}, v{96+r}")
    for r in range(20): A(f"v_fma_f32 v{48+r}, v{48+r}, s62, v9")
    for r in range(20): A(f"v_mul_f32 v{48+r}, v{48+r}, v{96+r}")
    for r in range(20): A(f"v_exp_f32 v{48+r}, v{48+r}")
    for r in range(20): A(f"v_add_f32 v{48+r}, 1.0, v{48+r}")
    for rt in range(5):
        for r in range(4*rt, 4*rt+4): A(f"v_rcp_f32 v{48+r}, v{48+r}")
        for r in range(4*rt, 4*rt+4): A(f"v_mul_f32 v{96+r}, v{96+r}, v{48+r}")
        A(f"v_cvt_pk_bf16_f32 v{70+2*rt}, v{96+4*rt}, v{97+4*rt}\nv_cvt_pk_bf16_f32 v{71+2*rt}, v{98+4*rt}, v{99+4*rt}")
        A(f"buffer_store_dwordx2 {vr(70+2*rt,2)}, v16, s[24:27], s46 offen\ns_add_u32 s46, s46, {16*4736}")
    endp(A, 1)
    A("p1_o:")
    A("s_lshl_b32 s45, s40, 2\ns_add_u32 s45, s45, s41\ns_sub_u32 s45, s45, 28\ns_and_b32 s43, s45, 7\ns_lshr_b32 s44, s45, 3")
    A("s_waitcnt lgkmcnt(0)")
    srd(A, 16, 14, SZ_KVP, WS_KVP); srd(A, 20, 14, SZ_X, WS_PQ); srd(A, 24, 14, SZ_X, WS_OT)
    p1_o(A)
    A(f"{k}_end:\ns_endpgm")

def p2(A):
    k = "p2_kernel"; head(A, k)
    A("s_load_dwordx2 s[4:5], s[0:1], 0\ns_load_dwordx4 s[8:11], s[0:1], 48\ns_load_dwordx2 s[12:13], s[0:1], 64\ns_load_dwordx2 s[14:15], s[0:1], 80")
    ids(A)
    A(f"s_lshr_b32 s43, s40, {P2M-2}\ns_lshl_b32 s43, s43, {P2M}\ns_and_b32 s45, s41, {(1<<P2M)-1}\ns_add_u32 s43, s43, s45")
    A(f"s_and_b32 s44, s40, {(1<<(P2M-2))-1}\ns_lshl_b32 s44, s44, {5-P2M}\ns_lshr_b32 s45, s41, {P2M}\ns_add_u32 s44, s44, s45")
    A(f"s_lshl_b32 s47, s43, 7\ns_mul_i32 s48, s44, {80*4736}")
    def mid():
        A("s_lshl_b32 s45, s43, 6\ns_and_b32 s46, s42, 1\ns_lshl_b32 s46, s46, 5\ns_add_u32 s45, s45, s46\ns_lshr_b32 s46, s42, 1\ns_lshl_b32 s46, s46, 4\ns_add_u32 s45, s45, s46\nv_and_b32 v2, 15, v1\nv_add_u32 v2, s45, v2\nv_lshlrev_b32 v3, 1, v2")
        A("v_mul_u32_u24 v16, 1280, v2\nv_lshrrev_b32 v4, 4, v1\nv_lshl_add_u32 v16, v4, 3, v16\ns_mul_i32 s45, s44, 160\nv_add_u32 v16, s45, v16")
        A("s_waitcnt lgkmcnt(0)"); srd(A, 24, 12, SZ_X); srd(A, 28, 4, SZ_X); srd(A, 32, 10, 4096)
        for rt in range(5): A(f"buffer_load_dwordx2 {vr(72+2*rt,2)}, v16, s[28:31], 0 offen offset:{32*rt}")
        A("buffer_load_ushort v84, v3, s[32:35], 0 offen")
    core(A, "p2g", 37, 4096, 4736, False, 2, [lambda: srd(A, 16, 8, SZ_W2), lambda: srd(A, 20, 14, SZ_UW, WS_UW), lambda: srd(A, 36, 14, SZ_X, WS_OT)], switch=27, mid=mid)
    A("v_lshlrev_b32 v84, 16, v84")
    for rt in range(5):
        a = 96+4*rt; x = 72+2*rt; t = 32+4*rt
        for h in range(2): A(f"v_lshlrev_b32 v{t+2*h}, 16, v{x+h}\nv_and_b32 v{t+2*h+1}, 0xffff0000, v{x+h}")
        for r in range(4): A(f"v_add_f32 v{a+r}, v{a+r}, v84")
        for r in range(4): A(f"v_add_f32 v{a+r}, v{a+r}, v{t+r}")
        A(f"v_cvt_pk_bf16_f32 v{x}, v{a}, v{a+1}\nv_cvt_pk_bf16_f32 v{x+1}, v{a+2}, v{a+3}")
        A(f"buffer_store_dwordx2 {vr(x,2)}, v16, s[24:27], 0 offen offset:{32*rt}")
    endp(A, 2)
    A(f"{k}_end:\ns_endpgm")

def desc(k, vg):
    return f""".p2align 6
.amdhsa_kernel {k}
  .amdhsa_next_free_vgpr {vg}
  .amdhsa_next_free_sgpr 88
  .amdhsa_accum_offset {vg}
  .amdhsa_group_segment_fixed_size 0
  .amdhsa_kernarg_size 88
  .amdhsa_user_sgpr_count 2
  .amdhsa_user_sgpr_kernarg_segment_ptr 1
  .amdhsa_system_sgpr_workgroup_id_x 1
.end_amdhsa_kernel
"""
def build():
    assert all((c*3277)>>16 == c//20 for c in range(1280)) and all((c*6554)>>16 == c//10 for c in range(1280)) and all((c*52)>>8 == c//5 for c in range(25)) and all((c*4370)>>16 == c//15 for c in range(256))
    A = Asm(); p0(A); p1(A); p2(A)
    hdr = "; generated by gen.py (hand-written generator): LN+qkv | token-mix GEMM1 + attn normalise | GEMM2+out-proj\n"
    hdr += f"; @launch kernel=p0_kernel grid=(256,1,1) block=(512,1,1) lds={P0_X+4096}\n"
    hdr += f"; @launch kernel=p1_kernel grid=(256,1,1) block=(384,1,1) lds={max(4096+4*96*272, NSL*CSLOT)}\n"
    hdr += f"; @launch kernel=p2_kernel grid=(256,1,1) block=(384,1,1) lds={NSL*CSLOT}\n"
    hdr += '.amdgcn_target "amdgcn-amd-amdhsa--gfx950"\n.text\n'
    return hdr + A.finish() + '.section .rodata,"a"\n' + desc("p0_kernel", 256) + desc("p1_kernel", 256) + desc("p2_kernel", 256)
if __name__ == "__main__":
    STAMP = "stamp" in sys.argv
    out = sys.argv[1] if len(sys.argv) > 1 else f"cdna_kernels/{NAME}.s"
    open(out, "w").write(build())
```

```python
import sys
s = open(sys.argv[1]).read()
stride = 512
nl = s.count("; @launch")
nk = f""".globl rep_kernel
.p2align 8
.type rep_kernel,@function
rep_kernel:
s_cmp_ge_u32 s2, 1
s_cbranch_scc1 rep_end
s_load_dwordx4 s[4:7], s[0:1], 72
v_lshrrev_b32 v1, 2, v0
v_lshlrev_b32 v1, 17, v1
v_and_b32 v2, 3, v0
v_lshlrev_b32 v3, 3, v2
v_lshrrev_b32 v4, 1, v2
v_lshlrev_b32 v4, 2, v4
v_sub_u32 v3, v3, v4
v_add_u32 v1, v1, v3
v_mov_b32 v5, {3*131072 - 200*512}
v_sub_u32 v5, v1, v5
v_cmp_le_u32 vcc, 12, v0
s_nop 1
v_cndmask_b32 v1, v1, v5, vcc
s_waitcnt lgkmcnt(0)
s_add_u32 s8, s6, 0x1000000
s_addc_u32 s9, s7, 0
s_mov_b32 s10, 0x100000
s_mov_b32 s11, 0x00020000
s_sub_u32 s12, s4, 0
s_subb_u32 s13, s5, 0
s_mov_b32 s14, 64
s_mov_b32 s15, 0x00020000
buffer_load_dword v6, v1, s[8:11], 0 offen
v_lshlrev_b32 v7, 2, v0
s_waitcnt vmcnt(0)
v_readfirstlane_b32 s16, v6
s_nop 3
v_subrev_u32 v6, s16, v6
buffer_store_dword v6, v7, s[12:15], 0 offen
rep_end:
s_endpgm
"""
d = s[s.index(".p2align 6\n.amdhsa_kernel p2_kernel"):].replace("p2_kernel", "rep_kernel")
L = "; @launch kernel=rep_kernel grid=(1,1,1) block=(64,1,1) lds=0\n"
body = s.replace('.section .rodata,"a"\n', nk + '.section .rodata,"a"\n') + d
i = body.index(".amdgcn_target")
open(sys.argv[2],'w').write(body[:i] + L + body[i:])
```

```python
import sys
from asmlib import Asm
NAME = "parallel_sum__linear_attn_block__mixer_token_mlp__prompt"
WS_HT, WS_PQ, WS_UW, WS_OT, WS_KVP = 0xC00000, 0x280000, 0x500000, 0x800000, 0xB00000
SZ_X = 2048*640*2; SZ_WQKV = 640*1920*2; SZ_WO = 640*640*2; SZ_W1 = 2048*1728*2; SZ_W2 = SZ_W1
SZ_UW = 640*4736; SZ_KVP = 128*6720
OOB = 0x40000000
LOG2E = 1.4426950408889634
import struct, os
OPT = dict(kv.split('=') for kv in os.environ.get('GOPT','').split(',') if kv)
def opt(k, d): return int(OPT.get(k, d))
HTP = opt('htp', 4096); P2M = opt('p2m', 2); PF0 = opt('pf0', 1)
def f2u(x): return "0x%08x" % struct.unpack("<I", struct.pack("<f", x))[0]

def srd(A, d, p, size, off=0):
    if off:
        A(f"s_add_u32 s{d}, s{p}, {off}\ns_addc_u32 s{d+1}, s{p+1}, 0")
    else:
        A(f"s_mov_b32 s{d}, s{p}\ns_mov_b32 s{d+1}, s{p+1}")
    A(f"s_mov_b32 s{d+2}, {size}\ns_mov_b32 s{d+3}, 0x00020000")
def vr(b, n): return f"v[{b}:{b+n-1}]"
def sr(b, n=4): return f"s[{b}:{b+n-1}]"
XB = 110592; P0_X = XB + 28672; NS0 = 3; P0_SLOT = 36864; NSL = 3; SUB = 18432; CSLOT = 2*SUB
def bf16r(A, d, s):
    A(f"v_cvt_pk_bf16_f32 v{d}, v{s}, v{s}\nv_and_b32 v{d}, 0xffff0000, v{d}")
def halfsum(A, r, t):
    A(f"v_mov_b32 v{t}, v{r}\nv_permlane32_swap_b32 v{t}, v{r}\nv_add_f32 v{r}, v{t}, v{r}")
def ln_scalars(A, sx, sxx, mb, rs, t):
    A(f"v_mul_f32 v{sx}, {f2u(1/640)}, v{sx}\nv_mul_f32 v{sxx}, {f2u(1/640)}, v{sxx}")
    A(f"v_fma_f32 v{sxx}, -v{sx}, v{sx}, v{sxx}\nv_max_f32 v{sxx}, 0, v{sxx}")
    bf16r(A, mb, sx); bf16r(A, t, sxx)
    A(f"v_add_f32 v{t}, {f2u(1e-5)}, v{t}"); bf16r(A, t, t)
    A(f"v_sqrt_f32 v{t}, v{t}"); bf16r(A, t, t)
    A(f"v_rcp_f32 v{rs}, v{t}")


STAMP = False
WS_ST = 0x1000000
def stamp(A, idx):
    if STAMP: A(f"s_memrealtime s[{64+2*idx}:{65+2*idx}]")
def stamp_out(A, kid, n=6):
    if not STAMP: return
    A(f"s_memrealtime s[{64+2*(n-1)}:{65+2*(n-1)}]\ns_waitcnt lgkmcnt(0)")
    srd(A, 76, 14, 1<<20, WS_ST)
    A(f"s_add_u32 s45, s2, {kid*256}\ns_lshl_b32 s45, s45, 3\ns_add_u32 s45, s45, s42\ns_lshl_b32 s45, s45, 6\nv_mov_b32 v2, s45")
    A("s_mov_b64 exec, 1")
    for i in range(n): A(f"v_mov_b32 v3, s{64+2*i}\nbuffer_store_dword v3, v2, s[76:79], 0 offen offset:{4*i}")
    A("s_mov_b64 exec, -1")
def bulk(A, t):
    A(f"v_mul_u32_u24 v2, 4370, v{t}\nv_lshrrev_b32 v2, 16, v2\nv_mul_u32_u24 v3, 15, v2\nv_sub_u32 v3, v{t}, v3")
    A("v_mul_u32_u24 v4, 52, v3\nv_lshrrev_b32 v4, 8, v4\nv_mul_u32_u24 v4, 640, v4\nv_lshl_add_u32 v3, v3, 7, v4")
    A("s_mul_i32 s45, s41, 17\ns_add_u32 s46, s45, 128\nv_add_u32 v2, s46, v2\nv_mul_u32_u24 v2, 3840, v2\nv_add_u32 v2, v2, v3\ns_and_b32 s46, s40, 1\ns_mul_i32 s46, s46, 640\nv_add_u32 v2, s46, v2")
    A("buffer_load_dword v250, v2, s[20:23], 0 offen")
    return 1
def a_cons(A, kind):
    L = f"p0{kind}"
    A("s_lshl_b32 s60, s42, 12")
    A("v_and_b32 v2, 31, v1\nv_lshrrev_b32 v3, 5, v1\nv_lshrrev_b32 v4, 1, v2\nv_and_b32 v4, 7, v4")
    A("v_lshlrev_b32 v5, 7, v2\nv_add_u32 v5, s60, v5")
    A("v_bfe_u32 v6, v1, 2, 2\nv_lshl_add_u32 v6, v3, 3, v6\nv_mul_u32_u24 v6, 320, v6")
    A("v_bfe_u32 v7, v1, 4, 1\nv_lshlrev_b32 v7, 5, v7\nv_and_b32 v8, 3, v1\nv_lshl_add_u32 v7, v8, 3, v7\nv_add_u32 v6, v6, v7\nv_add_u32 v6, 16384, v6")
    for jj in range(4):
        A(f"s_add_u32 s45, s42, {jj}\ns_and_b32 s45, s45, 3\ns_lshl_b32 s46, s45, 1\ns_mul_i32 s45, s45, 5120")
        A(f"v_add_u32 v7, s46, v3\nv_xor_b32 v7, v7, v4\nv_lshl_add_u32 v{20+jj}, v7, 4, v5\nv_add_u32 v{24+jj}, s45, v6")
        A(f"v_mov_b32 v{28+jj}, v{20+jj}\nv_mov_b32 v{32+jj}, v{24+jj}")
    A("s_mov_b32 s55, 0x3f803f80\ns_mov_b32 s50, 0\ns_mov_b32 s54, 0")
    for r in list(range(36, 44)) + list(range(96, 200)): A(f"v_mov_b32 v{r}, 0")
    A("v_and_b32 v2, 15, v1\nv_bfe_u32 v3, v1, 4, 1\nv_cmp_eq_u32 vcc, v2, v3\nv_mov_b32 v4, s55")
    for r in range(4): A(f"v_cndmask_b32 v{44+r}, 0, v4, vcc")
    SET = [48, 72]
    def rlist(jj):
        b = SET[jj & 1]
        R = [f"ds_read_b128 {vr(b,4)}, v{28+jj}"]
        for n in range(5):
            for hh in range(2):
                R.append(f"ds_read_b64_tr_b16 {vr(b+4+4*n+2*hh,2)}, v{32+jj} offset:{hh*1280+n*64}")
        return R
    def reads(jj):
        for r in rlist(jj): A(r)
    A("s_waitcnt lgkmcnt(0)")
    srd(A, 24, 14, *( (SZ_KVP, WS_KVP) if kind == 'kv' else (SZ_X, WS_PQ)))
    stamp(A, 1)
    A("s_barrier")
    stamp(A, 2)
    reads(0)
    A(f"{L}_loop:")
    A(f"s_add_u32 s50, s50, 1\ns_add_u32 s54, s54, {P0_SLOT}\ns_cmp_ge_u32 s54, {NS0*P0_SLOT}\ns_cselect_b32 s54, 0, s54")
    for jj in range(4):
        b = SET[jj & 1]
        FINE = opt('fine', 1)
        P0R = ([4,4,3,0,0] if jj == 2 else [3,2,2,2,2]) if FINE else [3,3,3,2,0]
        if jj == 3 or not FINE: A("s_waitcnt lgkmcnt(0)")
        if jj == 3: A("s_barrier")
        R = rlist((jj+1) & 3)
        dots = [f"v_mfma_f32_16x16x32_bf16 v[176:179], v[44:47], {vr(b,4)}, v[176:179]"]
        for r in range(2): dots.append(f"v_mfma_f32_4x4x4_16b_bf16 v[40:43], {vr(b+2*r,2)}, {vr(b+2*r,2)}, v[40:43]")

        j2 = {0: [0], 1: [1], 2: [2], 3: [3]}[jj]
        for j in j2: dots.append(f"v_add_u32 v{28+j}, s54, v{20+j}"); dots.append(f"v_add_u32 v{32+j}, s54, v{24+j}")
        per = (len(dots)+4)//5
        for n in range(5):
            acc = vr(96+16*n, 16)
            if FINE and jj < 3: A(f"s_waitcnt lgkmcnt({2*(4-n)+sum(P0R[:n])})")
            if kind == "kv": A(f"v_mfma_f32_32x32x16_bf16 {acc}, {vr(b,4)}, {vr(b+4+4*n,4)}, {acc}")
            else: A(f"v_mfma_f32_32x32x16_bf16 {acc}, {vr(b+4+4*n,4)}, {vr(b,4)}, {acc}")
            for _ in range(P0R[n]): A(R.pop(0))
            for d in dots[n*per:(n+1)*per]: A(d)
            if jj == 0: A(f"v_mfma_f32_16x16x32_bf16 {vr(180+4*n,4)}, v[44:47], {vr(b+4+4*n,4)}, {vr(180+4*n,4)}")
    A(f"s_cmp_lt_u32 s50, 10\ns_cbranch_scc1 {L}_loop\ns_waitcnt lgkmcnt(0)\ns_nop 2")
    stamp(A, 3)
    A("v_and_b32 v2, 1, v1\nv_cmp_eq_u32 vcc, 1, v2\nv_cndmask_b32 v40, v40, v41, vcc\nv_cndmask_b32 v42, v42, v43, vcc\nv_and_b32 v2, 2, v1\nv_cmp_eq_u32 vcc, 2, v2\nv_cndmask_b32 v38, v40, v42, vcc")
    halfsum(A, 38, 2)
    A(f"v_lshlrev_b32 v2, 2, v1\ns_mul_i32 s45, s42, 768\nv_add_u32 v3, s45, v2\nv_add_u32 v3, {P0_X}, v3")
    A("s_mov_b64 exec, 0xffff")
    for n in range(6):
        src = 176 if n == 5 else 180+4*n
        A(f"ds_write2_b32 v3, v{src}, v{src+1} offset0:{32*n} offset1:{32*n+16}")
    A(f"s_mov_b64 exec, -1\nv_and_b32 v2, 31, v1\nv_lshlrev_b32 v2, 2, v2\nv_add_u32 v2, {P0_X}, v2\nv_add_u32 v3, s45, v2\ns_waitcnt lgkmcnt(0)\nds_read_b32 v36, v3 offset:640\ns_waitcnt lgkmcnt(0)")
    ln_scalars(A, 36, 38, 37, 39, 4)
    A("s_waitcnt vmcnt(0) lgkmcnt(0)\ns_barrier")
    for n in range(5):
        for w in range(4): A(f"ds_read_b32 v{48+4*n+w}, v2 offset:{w*768+n*128}")
    if kind == "kv":
        A(f"v_and_b32 v4, 31, v1\nv_lshlrev_b32 v4, 2, v4\ns_lshl_b32 s45, s42, 7\nv_add_u32 v4, s45, v4\nv_add_u32 v4, {P0_X+3072}, v4\nds_write_b32 v4, v39")
    A("v_lshrrev_b32 v5, 16, v37\nv_or_b32 v72, v5, v37\nv_xor_b32 v72, 0x80008000, v72\nv_mov_b32 v73, 0\nv_mov_b32 v74, 0\nv_mov_b32 v75, 0")
    A("v_cmp_gt_u32 vcc, 32, v1")
    A("s_waitcnt lgkmcnt(0)")
    if kind == "kv":
        A(f"v_lshrrev_b32 v4, 5, v1\nv_lshlrev_b32 v4, 4, v4\nv_add_u32 v4, s45, v4\nv_add_u32 v4, {P0_X+3072}, v4")
        for q in range(4): A(f"ds_read_b128 {vr(176+4*q,4)}, v4 offset:{32*q}")
    for n in range(5):
        b = 48+4*n
        A(f"v_add_f32 v{b}, v{b}, v{b+1}\nv_add_f32 v{b+2}, v{b+2}, v{b+3}\nv_add_f32 v{b}, v{b}, v{b+2}")
        bf16r(A, b+1, b)
        A(f"v_sub_f32 v{b+2}, v{b}, v{b+1}\nv_cvt_pk_bf16_f32 v{b}, v{b+1}, v{b+2}\nv_cndmask_b32 v{b}, 0, v{b}, vcc")
        A(f"v_mov_b32 v{b+1}, 0\nv_mov_b32 v{b+2}, 0\nv_mov_b32 v{b+3}, 0")
    for n in range(5):
        acc = vr(96+16*n, 16)
        if kind == "kv": A(f"v_mfma_f32_32x32x16_bf16 {acc}, v[72:75], {vr(48+4*n,4)}, {acc}")
        else: A(f"v_mfma_f32_32x32x16_bf16 {acc}, {vr(48+4*n,4)}, v[72:75], {acc}")
    A(f"s_mov_b32 s62, {f2u(1e-6)}\ns_mov_b32 s63, {f2u(LOG2E)}\nv_mov_b32 v9, s62")
    def phi(r, rsreg, t, keep=None):
        if keep is not None: A(f"v_mul_f32 v{keep}, v{r}, v{rsreg}")
        A(f"v_fma_f32 v{r}, v{r}, v{rsreg}, v9\nv_mul_f32 v{t}, s63, v{r}\nv_exp_f32 v{t}, v{t} clamp\nv_max_f32 v{r}, s62, v{r}\nv_add_f32 v{r}, v{r}, v{t}")
    if kind == "q":
        A("s_lshl_b32 s45, s44, 7\ns_lshl_b32 s46, s43, 2\ns_add_u32 s45, s45, s46\ns_add_u32 s45, s45, s42\ns_mul_i32 s45, s45, 5120\nv_lshlrev_b32 v2, 4, v1\nv_add_u32 v3, 4096, v2")
        A(f"s_add_u32 s46, s45, {64*5120}")
        for n in range(5):
            for qq in range(2):
                a = 96+16*n+8*qq; o = 176+8*n+4*qq
                for r in range(8): phi(a+r, 39, 4+(r&3))
                for r in range(4): A(f"v_cvt_pk_bf16_f32 v{o+r}, v{a+2*r}, v{a+2*r+1}")
                A(f"v_permlane32_swap_b32 v{o}, v{o+2}\nv_permlane32_swap_b32 v{o+1}, v{o+3}")
                jj = 2*n+qq; A(f"buffer_store_dwordx4 {vr(o,4)}, v{3 if jj%5 == 4 else 2}, s[24:27], s{45+jj//5} offen offset:{1024*(jj%5&3)} sc1")
        stamp_out(A, 0)
        return
    A("s_waitcnt lgkmcnt(0)")
    A("v_and_b32 v2, 31, v1\nv_cmp_gt_u32 vcc, 16, v2")
    for n in range(5):
        for r in range(16):
            a = 96+16*n+r
            if n < 2: phi(a, 176+r, 4+(r&3))
            elif n == 2:
                phi(a, 176+r, 4+(r&1), keep=6+(r&1)); A(f"v_cndmask_b32 v{a}, v{6+(r&1)}, v{a}, vcc")
            else: A(f"v_mul_f32 v{a}, v{a}, v{176+r}")
        for r in range(8): A(f"v_cvt_pk_bf16_f32 v{48+8*n+r}, v{96+16*n+2*r}, v{96+16*n+2*r+1}")
    for r in range(4): A(f"v_mov_b32 v{88+r}, s55")
    prods = [(0,2),(0,3),(1,3),(1,4),(2,4)]
    for pi,(dt,et) in enumerate(prods):
        acc = vr(96+16*pi,16)
        A(f"v_mfma_f32_32x32x16_bf16 {acc}, {vr(48+8*dt,4)}, {vr(48+8*et,4)}, 0")
        A(f"v_mfma_f32_32x32x16_bf16 {acc}, {vr(52+8*dt,4)}, {vr(52+8*et,4)}, {acc}")
    for dt in range(3):
        acc = vr(176+16*dt,16)
        A(f"v_mfma_f32_32x32x16_bf16 {acc}, {vr(48+8*dt,4)}, v[88:91], 0")
        A(f"v_mfma_f32_32x32x16_bf16 {acc}, {vr(52+8*dt,4)}, v[88:91], {acc}")
    A("s_mul_i32 s45, s42, 7168\ns_add_u32 s45, s45, "+str(XB)+"\nv_lshrrev_b32 v3, 5, v1\nv_lshlrev_b32 v3, 2, v3\nv_mov_b32 v8, s45\nv_add_u32 v8, 6912, v8")
    for et in (2,3,4):
        A(f"v_add_u32 v4, {32*et-80}, v2")
        A(f"v_mul_i32_i24 v{10+et}, 80, v4\nv_add_u32 v{10+et}, s45, v{10+et}")
        A(f"v_mul_i32_i24 v5, 3277, v4\nv_ashrrev_i32 v5, 16, v5\nv_mul_i32_i24 v5, 20, v5\nv_sub_u32 v{16+et}, v3, v5")
    for pi,(dt,et) in enumerate(prods):
        for q in range(4):
            t = 24+(q&1)*2
            A(f"v_add_u32 v{t}, {32*dt+8*q}, v{16+et}\nv_cmp_gt_u32 vcc, 20, v{t}\nv_lshl_add_u32 v{t+1}, v{t}, 2, v{10+et}\nv_cndmask_b32 v{t+1}, v8, v{t+1}, vcc")
            A(f"ds_write_b128 v{t+1}, {vr(96+16*pi+4*q,4)}")
    A("v_lshlrev_b32 v4, 2, v3\nv_add_u32 v4, s45, v4")
    A("s_mov_b32 exec_lo, 1\ns_mov_b32 exec_hi, 1")
    for dt in range(3):
        for q in range(4):
            if 32*dt+8*q < 80: A(f"ds_write_b128 v4, {vr(176+16*dt+4*q,4)} offset:{6400+(32*dt+8*q)*4}")
    A("s_mov_b64 exec, -1\ns_waitcnt lgkmcnt(0)\ns_barrier")
    A(f"v_lshlrev_b32 v2, 4, v0\nv_add_u32 v6, {XB}, v2")
    for h in range(2):
        for w in range(4): A(f"ds_read_b128 {vr(48+16*h+4*w,4)}, v6 offset:{w*7168+h*4096}")
    A("s_lshl_b32 s45, s43, 3\ns_add_u32 s45, s45, s44\ns_mul_i32 s45, s45, 6720\nv_add_u32 v3, s45, v2")
    A(f"v_add_u32 v4, 4096, v3\nv_mov_b32 v5, {OOB}\nv_cmp_gt_u32 vcc, 164, v0\nv_cndmask_b32 v4, v5, v4, vcc")
    A("s_waitcnt lgkmcnt(0)")
    for h in range(2):
        b = 48+16*h
        for r in range(4): A(f"v_add_f32 v{b+r}, v{b+r}, v{b+4+r}\nv_add_f32 v{b+8+r}, v{b+8+r}, v{b+12+r}\nv_add_f32 v{b+r}, v{b+r}, v{b+8+r}")
        A(f"buffer_store_dwordx4 {vr(b,4)}, v{3+h}, s[24:27], 0 offen sc1")
    stamp_out(A, 0)

def aux_job(A):
    HP = 1312
    A("s_lshl_b32 s45, s43, 5\ns_lshl_b32 s46, s42, 2\ns_add_u32 s45, s45, s46")
    A("v_lshrrev_b32 v2, 4, v1\nv_add_u32 v3, s45, v2\nv_mul_u32_u24 v3, 1280, v3\nv_and_b32 v4, 15, v1\nv_lshl_add_u32 v3, v4, 4, v3\ns_waitcnt lgkmcnt(0)")
    srd(A, 16, 4, SZ_X)
    for i in range(5): A(f"buffer_load_dwordx4 {vr(16+4*i,4)}, v3, s[16:19], 0 offen offset:{256*i}")
    srd(A, 24, 14, SZ_X, WS_HT); srd(A, 28, 12, SZ_WO)
    A("s_mul_i32 s48, s96, 102400\ns_mul_i32 s50, s97, 160\ns_add_u32 s48, s48, s50")
    for i in range(2):
        A(f"v_add_u32 v5, {512*i}, v0\nv_mul_u32_u24 v6, 6554, v5\nv_lshrrev_b32 v6, 16, v6\nv_mul_u32_u24 v6, 1120, v6\nv_lshl_add_u32 v6, v5, 4, v6")
        if i: A(f"v_mov_b32 v7, {OOB}\nv_cmp_gt_u32 vcc, 800, v5\nv_cndmask_b32 v6, v7, v6, vcc")
        A(f"s_lshl_b32 s50, s42, 10\ns_add_u32 m0, s50, {XB+20480+8192*i}\nbuffer_load_dwordx4 v6, s[28:31], s48 offen lds")
    srd(A, 36, 84, SZ_W1)
    A("s_and_b32 s50, s41, 3\ns_lshl_b32 s50, s50, 9\nv_add_u32 v5, s50, v0\nv_mul_u32_u24 v5, 3456, v5\ns_lshl_b32 s50, s96, 7\nbuffer_load_dword v240, v5, s[36:39], s50 offen")
    A("s_mov_b32 s55, 0x3f803f80")
    A(f"v_add_u32 v5, s46, v2\nv_mul_u32_u24 v5, {HP}, v5\nv_lshl_add_u32 v5, v4, 4, v5")
    A(f"v_bfe_u32 v3, v1, 2, 2\nv_and_b32 v6, 3, v1\nv_lshl_add_u32 v7, v2, 3, v3\nv_mul_u32_u24 v7, {HP}, v7\nv_lshl_add_u32 v7, v6, 3, v7\ns_lshl_b32 s50, s42, 5\nv_add_u32 v7, s50, v7")
    A("v_lshlrev_b32 v40, 6, v4\nv_lshl_add_u32 v40, v2, 4, v40\ns_mul_i32 s50, s43, 40960\ns_lshl_b32 s51, s42, 10\ns_add_u32 s50, s50, s51")
    def red(r):
        for m in ("quad_perm:[1,0,3,2]", "quad_perm:[2,3,0,1]", "row_half_mirror", "row_mirror"):
            for q in r: A(f"v_add_f32_dpp v{q}, v{q}, v{q} {m} row_mask:0xf bank_mask:0xf")
    A("s_waitcnt vmcnt(3)")
    stamp(A, 2)
    for ln in range(2):
        for r in range(8, 12): A(f"v_mov_b32 v{r}, 0")
        for r in range(20):
            A(f"v_dot2c_f32_bf16 v{8+(r&1)}, s55, v{16+r}\nv_dot2c_f32_bf16 v{10+(r&1)}, v{16+r}, v{16+r}")
        A("v_add_f32 v8, v8, v9\nv_add_f32 v10, v10, v11")
        red((8, 10))
        ln_scalars(A, 8, 10, 14, 12, 9)
        A("v_mul_f32 v14, v14, v12\nv_sub_f32 v14, 0, v14\nv_mov_b32 v13, v12\nv_mov_b32 v15, v14")
        for r in range(20):
            t = 60+2*(r&7)
            A(f"v_lshlrev_b32 v{t}, 16, v{16+r}\nv_and_b32 v{t+1}, 0xffff0000, v{16+r}")
            A(f"v_pk_fma_f32 {vr(t,2)}, {vr(t,2)}, v[12:13], v[14:15]\nv_cvt_pk_bf16_f32 v{16+r}, v{t}, v{t+1}")
    for i in range(5): A(f"ds_write_b128 v5, {vr(16+4*i,4)} offset:{256*i}")
    stamp(A, 3)
    A("s_waitcnt lgkmcnt(0)\ns_barrier")
    for i in range(5):
        for hh in range(2): A(f"ds_read_b64_tr_b16 {vr(16+4*i+2*hh,2)}, v7 offset:{256*i+hh*4*HP}")
    for i in range(5):
        A(f"s_waitcnt lgkmcnt({8-2*i})\nbuffer_store_dwordx4 {vr(16+4*i,4)}, v40, s[24:27], s50 offen sc1\ns_add_u32 s50, s50, 8192")
def aux_wo(A):
    srd(A, 36, 14, SZ_UW, WS_UW)
    A(f"v_and_b32 v6, 3, v1\nv_and_b32 v4, 15, v1\nv_lshrrev_b32 v2, 4, v1\nv_bfe_u32 v3, v1, 2, 2\nv_lshl_add_u32 v8, v2, 2, v3\nv_mul_u32_u24 v8, 160, v8\nv_lshl_add_u32 v8, v6, 3, v8\nv_add_u32 v8, {XB+20480}, v8")
    A("v_mul_u32_u24 v9, 4736, v4\nv_lshl_add_u32 v9, v2, 3, v9\ns_mul_i32 s49, s97, 378880\ns_mul_i32 s44, s96, 160\ns_add_u32 s49, s49, s44\ns_add_u32 s49, s49, 3456\nv_add_u32 v9, s49, v9")
    for m in range(7):
        A(f"s_add_u32 s44, s42, {4*m}\ns_min_u32 s44, s44, 24\ns_mul_i32 s51, s44, 52\ns_lshr_b32 s51, s51, 8\ns_mul_i32 s52, s51, 5\ns_sub_u32 s52, s44, s52")
        A(f"s_mul_i32 s53, s52, 2560\ns_lshl_b32 s47, s51, 5\ns_add_u32 s53, s53, s47\nv_add_u32 v10, s53, v8\nds_read_b64_tr_b16 {vr(60+2*m,2)}, v10")
        A(f"s_mul_i32 s53, s51, {16*4736}\ns_lshl_b32 s47, s52, 5\ns_add_u32 s53, s53, s47\nv_add_u32 v{50+m}, s53, v9")
    A("s_waitcnt lgkmcnt(0)")
    for m in range(7): A(f"buffer_store_dwordx2 {vr(60+2*m,2)}, v{50+m}, s[36:39], 0 offen sc1")
def core_cons(A, L, NK, t_is_A, slot0, pub, mid):
    NS = (NK+1)//2
    stamp(A, 0)
    A(f"s_and_b32 s45, s42, 1\ns_lshl_b32 s45, s45, 1\ns_lshr_b32 s46, s42, 1\ns_or_b32 s45, s45, s46\ns_mul_i32 s46, s46, {SUB}")
    A("v_lshrrev_b32 v2, 4, v1\nv_bfe_u32 v3, v1, 2, 2\nv_and_b32 v4, 3, v1\nv_lshl_add_u32 v5, v2, 3, v3\nv_lshlrev_b32 v5, 7, v5\nv_lshl_add_u32 v5, v4, 3, v5\nv_add_u32 v5, s46, v5")
    A("v_lshrrev_b32 v6, 1, v3\nv_and_b32 v7, 1, v2\nv_lshl_or_b32 v6, v7, 1, v6\nv_xor_b32 v6, s45, v6\nv_lshl_add_u32 v20, v6, 5, v5\nv_xor_b32 v6, 1, v6\nv_lshl_add_u32 v21, v6, 5, v5")
    A("s_add_u32 s46, s46, 8192\nv_and_b32 v3, 15, v1\nv_lshrrev_b32 v4, 1, v3\nv_xor_b32 v4, v4, v2\nv_lshlrev_b32 v5, 7, v3\nv_add_u32 v5, s46, v5\nv_lshl_add_u32 v22, v4, 4, v5\nv_xor_b32 v4, 4, v4\nv_lshl_add_u32 v23, v4, 4, v5")
    for r in range(96, 136): A(f"v_mov_b32 v{r}, 0")
    SET = [136, 192]
    def readlist(p):
        b = SET[p]; R = []
        for ks in range(2):
            for tt in range(2):
                for hh in range(2): R.append(f"ds_read_b64_tr_b16 {vr(b+8*ks+4*tt+2*hh,2)}, v{24+tt} offset:{ks*4096+hh*512}")
            for rt in range(5): R.append(f"ds_read_b128 {vr(b+16+20*ks+4*rt,4)}, v{26+ks} offset:{2048*rt}")
        return R
    def radv():
        for j in range(4): A(f"v_add_u32 v{24+j}, s54, v{20+j}")
        A(f"s_add_u32 s54, s54, {CSLOT}\ns_cmp_ge_u32 s54, {NSL*CSLOT}\ns_cselect_b32 s54, 0, s54")
    A(f"s_mov_b32 s54, {slot0*CSLOT}\ns_mov_b32 s50, 0")
    radv()
    stamp(A, 1)
    if pub:
        A(f"s_cmp_lg_u32 s98, 1\ns_cbranch_scc1 {L}_no\ns_waitcnt vmcnt(0)"); atom(A, None, 58, 59); A(f"s_mov_b32 s59, 0\n{L}_no:")
    publish(A, L)
    mid()
    if pub: pub()
    stamp(A, 4)
    A("s_barrier\ns_barrier")
    stamp(A, 2)
    for r in readlist(0): A(r)
    radv()
    def body(p):
        b = SET[p]
        if pub and p: A(f"s_cmp_eq_u32 s50, s60\ns_cbranch_scc1 {L}_def\n{L}d_np:")
        A(f"s_waitcnt lgkmcnt(0)\ns_barrier")
        R = readlist(1-p); i = 0
        for ks in range(2):
            for rt in range(5):
                for tt in range(2):
                    acc = vr(96+20*tt+4*rt, 4); T = vr(b+8*ks+4*tt, 4); K = vr(b+16+20*ks+4*rt, 4)
                    if t_is_A: A(f"v_mfma_f32_16x16x32_bf16 {acc}, {T}, {K}, {acc}")
                    else: A(f"v_mfma_f32_16x16x32_bf16 {acc}, {K}, {T}, {acc}")
                    for _ in range(RPM[i]):
                        if R: A(R.pop(0))
                    if i == 16: radv()
                    i += 1
        assert not R
        A("s_add_u32 s50, s50, 1")
    A(f"{L}_loop:")
    body(0)
    A(f"s_cmp_ge_u32 s50, {NS}\ns_cbranch_scc1 {L}_done")
    body(1)
    A(f"s_cmp_lt_u32 s50, {NS}\ns_cbranch_scc1 {L}_loop")
    A(f"{L}_done:\ns_waitcnt vmcnt(0) lgkmcnt(0)")
    stamp(A, 3)
    A(f"v_lshlrev_b32 v2, 4, v1\nv_add_u32 v2, {XB}, v2\ns_mul_i32 s45, s42, 5120\nv_add_u32 v3, s45, v2\ns_xor_b32 s46, s42, 2\ns_mul_i32 s46, s46, 5120\nv_add_u32 v4, s46, v2")
    for rt in range(5): A(f"ds_write_b128 v3, {vr(116+4*rt,4)} offset:{1024*rt}")
    A("s_waitcnt lgkmcnt(0)\ns_barrier")
    for rt in range(5): A(f"ds_read_b128 {vr(136+4*rt,4)}, v4 offset:{1024*rt}")
    A("s_waitcnt lgkmcnt(0)")
    for r in range(20): A(f"v_add_f32 v{96+r}, v{96+r}, v{136+r}")
RPM = [2,1,2,1,2,1,2,1,2,1,2,1,0,0,0,0,0,0,0,0]

def o_cons(A):
    PO = 176; OB = XB+4096
    A("s_mul_i32 s45, s43, 6720\nv_lshlrev_b32 v2, 4, v0\nv_add_u32 v3, s45, v2")
    A(f"v_add_u32 v4, 4096, v3\nv_mov_b32 v5, {OOB}\nv_cmp_gt_u32 vcc, 164, v0\nv_cndmask_b32 v4, v5, v4, vcc\ns_mov_b32 s46, 0")
    for i in range(16):
        A(f"buffer_load_dwordx4 {vr(96+8*i,4)}, v3, s[16:19], s46 offen sc1\nbuffer_load_dwordx4 {vr(100+8*i,4)}, v4, s[16:19], s46 offen sc1\ns_add_u32 s46, s46, {8*6720}")
    A("s_lshl_b32 s45, s43, 4\ns_lshl_b32 s46, s44, 2\ns_add_u32 s45, s45, s46\ns_add_u32 s45, s45, s42\ns_mul_i32 s45, s45, 20480\nv_lshlrev_b32 v7, 4, v1")
    for i in range(20):
        A(f"buffer_load_dwordx4 {vr(16+4*i,4)}, v7, s[20:23], s45 offen offset:{1024*(i&3)} sc1")
        if i & 3 == 3: A("s_add_u32 s45, s45, 4096")
    A("v_and_b32 v6, 31, v1\nv_lshrrev_b32 v8, 5, v1\nv_lshlrev_b32 v9, 3, v8\nv_mov_b32 v5, "+str(XB+3584))
    for et in range(3):
        A(f"v_add_u32 v2, {32*et}, v6\nv_mul_u32_u24 v{10+et}, 40, v2\nv_add_u32 v{10+et}, {XB}, v{10+et}\nv_mul_u32_u24 v3, 3277, v2\nv_lshrrev_b32 v3, 16, v3\nv_mul_u32_u24 v3, 20, v3\nv_sub_u32 v{13+et}, v9, v3")
    A("v_and_b32 v2, 3, v1\nv_bfe_u32 v3, v1, 3, 2\nv_lshl_add_u32 v2, v3, 2, v2\nv_and_b32 v3, 4, v1\nv_lshl_add_u32 v2, v2, 3, v3\nv_mul_u32_u24 v3, 3277, v2\nv_lshrrev_b32 v3, 16, v3\nv_mul_u32_u24 v3, 20, v3\nv_sub_u32 v252, v9, v3")
    steps = [(0,0),(0,1),(0,2),(1,1),(1,2),(1,3),(1,4),(2,3),(2,4)]
    AD = 224
    for i,(et,j) in enumerate(steps):
        for hq in range(2):
            A(f"v_add_u32 v2, {16*j+4*hq}, v{13+et}\nv_lshl_add_u32 v3, v2, 1, v{10+et}\nv_cmp_gt_u32 vcc, 20, v2\nv_cndmask_b32 v{AD+2*i+hq}, v5, v3, vcc")
    for j in range(5):
        for hq in range(2):
            dq = 16*j+4*hq
            A(f"v_add_u32 v2, {dq}, v252\nv_lshlrev_b32 v3, 1, v9\nv_add_u32 v3, {XB+3200+2*dq}, v3\nv_cmp_gt_u32 vcc, 20, v2\nv_cndmask_b32 v{AD+18+2*j+hq}, v5, v3, vcc")
    stamp(A, 1)
    for i in range(1, 16):
        A(f"s_waitcnt vmcnt({20+2*(15-i)})")
        for r in range(4): A(f"v_pk_add_f32 {vr(96+2*r,2)}, {vr(96+2*r,2)}, {vr(96+8*i+2*r,2)}")
    stamp(A, 2)
    for r in range(4): A(f"v_cvt_pk_bf16_f32 v{104+r}, v{96+2*r}, v{96+2*r+1}")
    A(f"v_lshlrev_b32 v2, 3, v0\nv_add_u32 v2, {XB}, v2\nds_write_b64 v2, v[104:105]\nds_write_b64 v2, v[106:107] offset:2048")
    A("s_waitcnt lgkmcnt(0)\ns_barrier")
    for i in range(28): A(f"ds_read_b64 {vr(96+2*i,2)}, v{AD+i}")
    for r in range(16): A(f"v_mov_b32 v{152+r}, {f2u(1e-6)}")
    A(f"s_mul_i32 s45, s42, {64*PO}\ns_add_u32 s45, s45, {OB}\nv_mul_u32_u24 v2, {PO}, v6\nv_add_u32 v2, s45, v2\nv_add_u32 v2, v2, v9")
    A(f"v_lshrrev_b32 v3, 4, v1\nv_bfe_u32 v4, v1, 1, 1\nv_lshl_add_u32 v3, v3, 1, v4\nv_bfe_u32 v4, v1, 2, 2\nv_lshl_add_u32 v5, v3, 3, v4\nv_mul_u32_u24 v5, {PO}, v5\nv_and_b32 v4, 1, v1\nv_lshl_add_u32 v5, v4, 3, v5\nv_add_u32 v5, s45, v5")
    A("s_mul_i32 s46, s43, 80\nv_and_b32 v7, 7, v1\nv_add_u32 v7, s46, v7\nv_lshlrev_b32 v7, 12, v7\nv_lshrrev_b32 v3, 3, v1\nv_lshl_add_u32 v7, v3, 4, v7\ns_lshl_b32 s46, s44, 10\ns_lshl_b32 s47, s42, 8\ns_add_u32 s46, s46, s47\nv_add_u32 v7, s46, v7")
    A("s_waitcnt vmcnt(0) lgkmcnt(0)")
    stamp(A, 3)
    N = [168, 184, 200]; D = 216
    def fin(b, et):
        R = 232+10*(b&1); W = []
        for q in range(4 if et < 2 else 2):
            n = N[et]+4*q
            W += [f"v_mul_f32 v{n+c}, v{n+c}, v{R+4*et+q}" for c in range(4)]
            W += [f"v_cvt_pk_bf16_f32 v{n}, v{n}, v{n+1}", f"v_cvt_pk_bf16_f32 v{n+1}, v{n+2}, v{n+3}", f"ds_write_b64 v2, {vr(n,2)} offset:{32*(b&1)*PO+64*et+16*q}"]
        return W
    def trr(h): return [f"ds_read_b64_tr_b16 {vr(16+40*h+4*i+2*hh,2)}, v5 offset:{4*hh*PO+16*i}" for i in range(10) for hh in range(2)]
    def sto(h):
        W = []
        for i in range(10): W += [f"s_mov_b32 s46, {32768*i}", f"buffer_store_dwordx4 {vr(16+40*h+4*i,4)}, v7, s[24:27], s46 offen offset:{128*h} sc1"]
        return W
    def emit(M, F, skip):
        per = -(-len(F)//max(1, len(M)-skip))
        for i, m in enumerate(M):
            A(m)
            if i >= skip:
                for f in F[(i-skip)*per:(i-skip+1)*per]: A(f)
    for b in range(4):
        pq = lambda j: vr(16+20*b+4*j, 4)
        emit([f"v_mfma_f32_32x32x16_bf16 {vr(D,16)}, {vr(132+4*j,4)}, {pq(j)}, {vr(D,16) if j else vr(152,16)}" for j in range(5)], fin(b-1,1)+fin(b-1,2) if b else [], 0)
        M = []
        for i,(et,j) in enumerate(steps):
            first = i == 0 or steps[i-1][0] != et
            M.append(f"v_mfma_f32_32x32x16_bf16 {vr(N[et],16)}, {vr(96+4*i,4)}, {pq(j)}, {'0' if first else vr(N[et],16)}")
        rc = [f"v_rcp_f32 v{232+10*(b&1)+r}, v{D+r}" for r in range(10)]
        emit(M[:4], (["s_waitcnt lgkmcnt(0)"]+trr(0) if b == 2 else []) + rc, 0 if b == 2 else 1)
        if b == 2: A("s_waitcnt lgkmcnt(0)")
        emit(M[4:], fin(b, 0) + (sto(0)[:10] if b == 2 else sto(0)[10:] if b == 3 else []), 0)
    for f in fin(3,1)+fin(3,2)+["s_waitcnt lgkmcnt(0)"]+trr(1)+["s_waitcnt lgkmcnt(0)"]+sto(1): A(f)
    stamp_out(A, 1)

class Stream:
    def __init__(s, A, items, adv, prep): s.A, s.items, s.adv, s.prep = A, items, adv, prep
    def issue(s, first=False):
        A = s.A
        for i, (v, sd, so, base, lo, mod) in enumerate(s.items):
            if first: s.prep(i)
            A(f"s_add_u32 m0, s{base}, {lo}\nbuffer_load_dwordx4 v{v}, {sr(sd)}, s{so} offen {mod}lds")
        A("s_add_u32 s58, s58, 1"); s.adv()
        A(f"s_add_u32 s59, s59, {CSLOT}\ns_cmp_ge_u32 s59, {3*CSLOT}\ns_cselect_b32 s59, 0, s59\ns_add_u32 s53, s59, s60\ns_add_u32 s57, s59, s61")
WS_Z = 0xF00000; ZS = 256
def poll_issue(A, L, off, sd=8, w="s49"):
    A(f"s_cmp_lg_u32 {w}, 0\ns_cbranch_scc1 {L}_pi\nbuffer_load_dword v34, off, {sr(sd)}, {off} sc1\n{L}_pi:")
def poll_check(A, L, off, tgt, sd=8, w="s49"):
    A(f"s_cmp_lg_u32 {w}, 0\ns_cbranch_scc1 {L}_ok\ns_mov_b32 s63, 0x40000\n{L}_chk:\nv_readfirstlane_b32 s55, v34\ns_nop 1\ns_cmp_ge_u32 s55, {tgt}\ns_cbranch_scc1 {L}_ok")
    A(f"s_sub_u32 s63, s63, 1\ns_cbranch_scc1 {L}_ok\nbuffer_load_dword v34, off, {sr(sd)}, {off} sc1\ns_waitcnt vmcnt(0)\ns_branch {L}_chk\n{L}_ok:")
def a_stream(A, kind):
    A("s_lshl_b32 s45, s43, 7\ns_lshl_b32 s46, s49, 5\ns_add_u32 s45, s45, s46\ns_mul_i32 s51, s45, 1280\ns_mov_b32 s52, s47")
    A("v_lshrrev_b32 v2, 3, v1\nv_mul_u32_u24 v2, 1280, v2\nv_lshrrev_b32 v3, 4, v1\nv_and_b32 v4, 7, v1\nv_xor_b32 v3, v3, v4\nv_lshl_add_u32 v10, v3, 4, v2")
    A("s_lshl_b32 s60, s49, 12\ns_mul_i32 s61, s49, 5120\ns_add_u32 s61, s61, 16384\ns_mul_i32 s46, s49, 320")
    A("s_mov_b32 s58, 0\ns_mov_b32 s59, 0\ns_mov_b32 s53, s60\ns_mov_b32 s57, s61")
    def prep(i):
        if i == 0: A("s_waitcnt lgkmcnt(0)"); srd(A, 16, 4, SZ_X); stamp(A, 1)
        if i == 1: A(f"v_xor_b32 v11, 64, v10\nv_add_u32 v11, {8*1280}, v11")
        if i in (2, 3): A(f"v_add_u32 v{10+i}, {16*1280}, v{8+i}")
        if i == 4:
            srd(A, 20, 6, SZ_WQKV)
            A(f"s_movk_i32 s62, {1280 if kind == 'kv' else 3520}\ns_movk_i32 s63, 1120\nv_add_u32 v5, s46, v1")
        if i >= 4:
            if i > 4: A("v_add_u32 v5, 64, v5")
            if kind == "kv":
                A(f"v_mul_u32_u24 v6, 6554, v5\nv_lshlrev_b32 v7, 4, v5\nv_lshrrev_b32 v8, 16, v6\nv_lshrrev_b32 v6, 17, v6\nv_mad_u32_u24 v7, v8, s63, v7\nv_mad_u32_u24 v{10+i}, v6, s62, v7")
            else:
                A(f"v_mul_u32_u24 v6, 3277, v5\nv_lshlrev_b32 v7, 4, v5\nv_lshrrev_b32 v6, 16, v6\nv_mad_u32_u24 v{10+i}, v6, s62, v7")
    items = [(10+m, 16, 51, 53, m*1024, "") for m in range(4)] + [(14+m, 20, 52, 57, m*1024, "") for m in range(5)]
    return Stream(A, items, lambda: A(f"s_add_u32 s51, s51, 128\ns_add_u32 s52, s52, {64*3840}"), prep)
def g_stream(A, job):
    tp, kp, ks = (3456, 64, 81920) if job == "B" else (4096, 4736, 128)
    def setup():
        if job == "B":
            srd(A, 16, 84, SZ_W1); srd(A, 20, 14, SZ_X, WS_HT)
            A(f"s_lshl_b32 s47, s96, 7\ns_mul_i32 s48, s97, {80*64}")
        else:
            srd(A, 16, 88, SZ_W2); srd(A, 20, 14, SZ_UW, WS_UW); srd(A, 36, 14, SZ_X, WS_OT)
            A(f"s_lshl_b32 s47, s40, 2\ns_and_b32 s45, s41, 3\ns_add_u32 s47, s47, s45\ns_lshl_b32 s47, s47, 7\ns_lshr_b32 s48, s41, 2\ns_mul_i32 s48, s48, {80*4736}")
        A(f"s_and_b32 s45, s49, 1\ns_lshr_b32 s56, s49, 1\ns_mul_i32 s46, s45, {32*tp}\ns_add_u32 s47, s47, s46\ns_mul_i32 s46, s45, {40*kp}\ns_add_u32 s48, s48, s46")
        A(f"s_mul_i32 s60, s56, {SUB}\ns_mul_i32 s46, s45, 5120\ns_add_u32 s61, s60, s46\ns_add_u32 s61, s61, 8192\ns_lshl_b32 s46, s45, 12\ns_add_u32 s60, s60, s46\ns_lshl_b32 s45, s45, 2")
        A(f"s_mul_i32 s51, s56, {64*tp}\ns_mul_i32 s52, s56, {ks}\ns_mov_b32 s58, 0\ns_add_u32 s53, s59, s60\ns_add_u32 s57, s59, s61")
        A("v_lshrrev_b32 v2, 3, v1\nv_and_b32 v4, 7, v1\nv_bfe_u32 v3, v1, 4, 1\nv_lshlrev_b32 v3, 1, v3")
        A(f"v_mul_u32_u24 v5, {tp}, v2\nv_add_u32 v5, s47, v5\nv_xor_b32 v6, v3, v4\nv_lshl_add_u32 v10, v6, 4, v5\nv_xor_b32 v6, 4, v6\nv_lshl_add_u32 v11, v6, 4, v5\nv_add_u32 v11, {8*tp}, v11")
        A(f"v_add_u32 v12, {16*tp}, v10\nv_add_u32 v13, {16*tp}, v11")
        A(f"v_lshrrev_b32 v3, 4, v1\nv_xor_b32 v3, v3, v4\nv_xor_b32 v3, s45, v3\nv_mul_u32_u24 v7, {kp}, v2\nv_add_u32 v7, s48, v7\nv_lshl_add_u32 v14, v3, 4, v7\nv_xor_b32 v3, 4, v3\nv_lshl_add_u32 v15, v3, 4, v7\nv_add_u32 v15, {8*kp}, v15")
        if job == "B": A(f"v_lshrrev_b32 v3, 2, v3\nv_mul_u32_u24 v8, {40960-64}, v3\nv_add_u32 v15, v15, v8\nv_xor_b32 v3, 1, v3\nv_mul_u32_u24 v8, {40960-64}, v3\nv_add_u32 v14, v14, v8")
        for m in range(2, 5): A(f"v_add_u32 v{14+m}, {16*kp}, v{12+m}")
    def adv():
        A(f"s_add_u32 s51, s51, {128*tp}\ns_add_u32 s52, s52, {2*ks}\ns_add_u32 s56, s56, 2")
        if job == "C":
            A(f"s_sub_u32 s45, s56, 27\ns_mul_i32 s46, s45, {64*tp}\ns_cmp_lt_u32 s45, 2\ns_cselect_b32 s16, s36, s16\ns_cselect_b32 s17, s37, s17\ns_cselect_b32 s18, s38, s18\ns_cselect_b32 s51, s46, s51")
            A(f"s_cmp_ge_u32 s56, 37\ns_cselect_b32 s52, {OOB}, s52")
    items = []
    for m in range(5):
        if m < 4: items.append((10+m, 16, 51, 53, m*1024, "sc1 " if job == "C" else ""))
        items.append((14+m, 20, 52, 57, m*1024, "sc1 "))
    st = Stream(A, items, adv, None); st.setup = setup
    return st
def pf_w1(A):
    srd(A, 24, 84, SZ_W1)
    A(f"s_and_b32 s45, s41, 3\ns_lshl_b32 s45, s45, 9\ns_sub_u32 s45, s45, 256\nv_add_u32 v2, s45, v0\nv_mul_u32_u24 v2, 3456, v2\ns_lshl_b32 s45, s96, 7\nv_add_u32 v2, s45, v2\ns_mov_b32 s45, {256*3456}")
    A("buffer_load_dword v240, v2, s[24:27], 0 offen\nbuffer_load_dword v241, v2, s[24:27], s45 offen")
    return 2
def pf_w2(A):
    srd(A, 24, 88, SZ_W2)
    A("s_lshr_b32 s45, s41, 2\ns_mul_i32 s45, s45, 216\ns_sub_u32 s45, s45, 256\nv_add_u32 v2, s45, v0\nv_lshlrev_b32 v2, 12, v2\ns_lshl_b32 s45, s40, 2\ns_and_b32 s46, s41, 3\ns_add_u32 s45, s45, s46\ns_lshl_b32 s45, s45, 7\nv_add_u32 v2, s45, v2")
    A(f"v_mov_b32 v4, {OOB}\nv_cmp_gt_u32 vcc, {256+216}, v0\nv_cndmask_b32 v2, v4, v2, vcc\nbuffer_load_dword v242, v2, s[24:27], 0 offen")
    return 1
def masks(A):
    srd(A, 8, 14, 256*ZS, WS_Z); srd(A, 24, 94, 256)
    A(f"s_and_b32 s28, s40, 1\ns_lshl_b32 s28, s28, 7\ns_mul_i32 s29, s40, {ZS}\ns_lshr_b32 s30, s41, 2\ns_mul_i32 s30, s30, {8*ZS}\ns_add_u32 s30, s30, s29\ns_add_u32 s30, s30, {40*ZS}\ns_add_u32 s31, s30, {64*ZS}\ns_add_u32 s32, s30, {128*ZS}\ns_add_u32 s33, s29, {232*ZS}")
def loaders(A):
    B = g_stream(A, "B"); C = g_stream(A, "C")
    W = "s_waitcnt vmcnt(9)"; WB = W + "\ns_barrier"
    for kind in ("kv", "q"):
        L = f"l{kind}"
        A(f"{L}:"); S = a_stream(A, kind)
        S.issue(True); S.issue(); A("v_and_b32 v6, 255, v0"); npo = bulk(A, 6); masks(A)
        A(f"s_waitcnt vmcnt({9+npo})\ns_barrier\n{L}_ld:"); S.issue(); A(f"{WB}\ns_cmp_lt_u32 s58, 8\ns_cbranch_scc1 {L}_ld")
        poll_issue(A, L+"i", "s28", 24); S.issue(); A(W); poll_check(A, L+"i", "s28", 1, 24); A("s_barrier")
        poll_issue(A, L+"h", "s29"); S.issue(); A(W); stamp(A, 2)
        if kind == "kv": A("s_mov_b32 s99, 1\ns_cmp_lg_u32 s98, 0\ns_cbranch_scc1 l_nob\ns_branch l_be")
        else: A("s_mov_b32 s99, 0")
    A("l_be:"); poll_check(A, "l_be", "s29", 64); A("s_barrier"); B.setup()
    B.issue(); A(WB); B.issue(); A("s_barrier\ns_barrier"); B.issue(); n = pf_w1(A) + (pf_w2(A) if opt('e2', 0) else 0)
    A(f"s_cmp_eq_u32 s99, 0\ns_cbranch_scc1 l_be2\ns_barrier\nl_be2:\ns_barrier\ns_barrier\ns_waitcnt vmcnt({18+n})\ns_barrier\ns_waitcnt vmcnt({9+n})\ns_barrier")
    A("l_bl:"); B.issue(); A(f"{WB}\ns_cmp_lt_u32 s58, 15\ns_cbranch_scc1 l_bl")
    poll_issue(A, "l_bp", "s30"); B.issue(); A(W); stamp(A, 3)
    A("s_cmp_eq_u32 s98, 3\ns_cbranch_scc1 l_bx")
    poll_check(A, "l_ce", "s30", 8); A("s_barrier"); C.setup()
    C.issue(); A(WB); C.issue(); A("s_barrier\ns_barrier"); C.issue(); n = pf_w2(A)
    A(f"s_barrier\nl_ce3:\ns_barrier\ns_barrier\ns_waitcnt vmcnt({18+n})\ns_barrier\ns_waitcnt vmcnt({9+n})\ns_barrier")
    A("l_c0:\ns_mov_b32 s99, 0x0c0703\ns_mov_b32 s34, 0x204c08")
    A("l_cl:\ns_and_b32 s62, s99, 255\ns_cmp_lg_u32 s58, s62\ns_cbranch_scc1 l_c1"); poll_issue(A, "l_cq", "s31"); A("l_c1:"); C.issue(); A(W)
    A("s_add_u32 s62, s62, 1\ns_cmp_lg_u32 s58, s62\ns_cbranch_scc1 l_c2\ns_and_b32 s35, s34, 255"); poll_check(A, "l_cp", "s31", "s35")
    if STAMP and opt('cst', 0): A("s_mov_b64 s[64:65], s[66:67]\ns_mov_b64 s[66:67], s[68:69]\ns_mov_b64 s[68:69], s[70:71]\ns_memrealtime s[70:71]\ns_waitcnt lgkmcnt(0)")
    A("s_mov_b32 s31, s32\ns_mov_b32 s32, s33\ns_lshr_b32 s99, s99, 8\ns_lshr_b32 s34, s34, 8\nl_c2:\ns_barrier\ns_cmp_lt_u32 s58, 19\ns_cbranch_scc1 l_cl")
    stamp(A, 4)
    A("s_waitcnt vmcnt(0)\ns_barrier\ns_barrier"); stamp_out(A, 0); A("s_endpgm")
    A("l_nob:\ns_barrier\ns_waitcnt vmcnt(0)\ns_barrier")
    if opt('e2', 0): pf_w2(A)
    A("s_barrier\ns_barrier\ns_barrier\ns_cmp_lg_u32 s98, 1\ns_cbranch_scc1 l_clate")
    A(f"v_mov_b32 v34, 0\nv_mov_b32 v35, 163824\nds_write_b32 v35, v34\ns_mov_b32 s59, {2*CSLOT}"); C.setup()
    A("s_waitcnt lgkmcnt(0)\ns_barrier\ns_barrier\ns_barrier"); poll_check(A, "l_op", "s30", 8)
    A("s_cmp_lg_u32 s49, 0\ns_cbranch_scc1 l_ow\nv_mov_b32 v34, 1\nds_write_b32 v35, v34\nl_ow:\nds_read_b32 v34, v35\ns_waitcnt lgkmcnt(0)\nv_readfirstlane_b32 s55, v34\ns_nop 1\ns_cmp_eq_u32 s55, 0\ns_cbranch_scc1 l_ow")
    C.issue(); C.issue(); C.issue(); pf_w2(A); A("s_branch l_ce3")
    A("l_bx:\ns_barrier\ns_waitcnt vmcnt(0)\ns_barrier\ns_barrier\ns_barrier\ns_barrier")
    A(f"l_clate:\ns_mov_b32 s59, {2*CSLOT}"); C.setup(); A("v_mov_b32 v34, 0\ns_barrier"); pf_w2(A); poll_check(A, "l_cx", "s30", 8); A("s_barrier")
    C.issue(); C.issue(); A(f"{WB}\ns_branch l_c0")
    A("laux:"); masks(A); A("v_mov_b32 v34, 0"); poll_check(A, "l_ai", "s28", 1, 24); A("s_waitcnt vmcnt(0)\ns_barrier")
    srd(A, 20, 6, SZ_WQKV); A("v_and_b32 v6, 255, v0"); bulk(A, 6)
    A(f"s_mov_b32 s59, {CSLOT}"); B.setup(); A("v_mov_b32 v34, 0\ns_barrier"); poll_check(A, "l_ax", "s29", 64); A("s_barrier"); stamp(A, 2)
    B.issue(); B.issue(); n = pf_w2(A) if opt('e2', 0) else 0; A(f"s_waitcnt vmcnt({9+n})\ns_barrier\ns_branch l_bl")

def atom(A, L, o, m):
    if L: A(f"s_cmp_lg_u32 s42, 0\ns_cbranch_scc1 {L}_np")
    srd(A, 8, 14, 256*ZS, WS_Z)
    A(f"v_mul_u32_u24 v2, {ZS}, v1\nv_mov_b32 v3, 1\ns_mov_b32 exec_lo, s{m}\ns_mov_b32 exec_hi, 0\nbuffer_atomic_add v3, v2, s[8:11], s{o} offen sc1\ns_mov_b64 exec, -1")
def publish(A, L):
    A(f"s_cmp_eq_u32 s57, 0\ns_cbranch_scc1 {L}_p0\ns_waitcnt vmcnt(0)\n{L}_p0:\ns_barrier\ns_cbranch_scc1 {L}_np")
    atom(A, L, 56, 57); A(f"{L}_np:")

def main(A):
    k = KN
    A(f".globl {k}\n.p2align 8\n.type {k},@function\n{k}:\ns_cmp_ge_u32 s2, 256\ns_cbranch_scc1 k_end")
    for i in range(6): stamp(A, i)
    A("s_load_dwordx4 s[4:7], s[0:1], 0\ns_load_dwordx2 s[12:13], s[0:1], 16\ns_load_dwordx8 s[84:91], s[0:1], 32\ns_load_dwordx4 s[92:95], s[0:1], 64\ns_load_dwordx2 s[14:15], s[0:1], 80")
    A("v_and_b32 v1, 63, v0\nv_lshrrev_b32 v2, 6, v0\ns_and_b32 s40, s2, 7\ns_lshr_b32 s41, s2, 3\nv_readfirstlane_b32 s42, v2")
    A("s_lshr_b32 s46, s40, 1\ns_lshl_b32 s43, s46, 2\ns_and_b32 s45, s41, 3\ns_add_u32 s43, s43, s45")
    A("s_and_b32 s44, s40, 1\ns_lshl_b32 s97, s44, 2\ns_add_u32 s97, s97, s45\ns_lshr_b32 s45, s41, 2\ns_sub_u32 s49, s42, 4\ns_mov_b32 s98, 0")
    A("s_cmp_ge_u32 s41, 24\ns_cbranch_scc1 r_aux\ns_cmp_ge_u32 s41, 16\ns_cbranch_scc1 r_q")
    A("s_lshl_b32 s44, s44, 2\ns_add_u32 s44, s44, s45\ns_mul_i32 s47, s44, 160\ns_add_u32 s47, s47, 1280")
    A("s_mul_i32 s96, s46, 3\ns_add_u32 s96, s96, s45\ns_add_u32 s96, s96, 16\ns_cmp_ge_u32 s96, 27\ns_cselect_b32 s98, 2, 0\ns_cmp_eq_u32 s45, 3\ns_cselect_b32 s98, 1, s98")
    A("s_cmp_lt_u32 s42, 4\ns_cbranch_scc1 ckv")
    loaders(A)
    A("r_q:\ns_lshl_b32 s96, s46, 1\ns_add_u32 s96, s96, s45\ns_add_u32 s96, s96, 4\ns_lshl_b32 s44, s44, 1\ns_add_u32 s44, s44, s45\ns_sub_u32 s44, s44, 4\ns_mul_i32 s47, s44, 320")
    A("s_cmp_ge_u32 s42, 4\ns_cbranch_scc1 lq")
    A(f"s_mul_i32 s56, s44, {8*ZS}\ns_add_u32 s56, s56, {8*ZS}\ns_mov_b32 s57, 255\ns_mov_b32 s58, {104*ZS}")
    a_cons(A, "q"); A("s_branch cB")
    A("r_aux:\ns_lshl_b32 s96, s46, 1\ns_add_u32 s96, s96, s45\ns_sub_u32 s96, s96, 6\ns_mov_b32 s98, 3")
    A("s_sub_u32 s44, s41, 24\ns_lshl_b32 s43, s40, 3\ns_add_u32 s43, s43, s44")
    aux_job(A)
    A(f"s_cmp_ge_u32 s42, 4\ns_cbranch_scc1 laux\ns_mov_b32 s56, 0\ns_mov_b32 s57, 255\ns_mov_b32 s58, {40*ZS}")
    stamp(A, 4); publish(A, "ax"); stamp_out(A, 0); A("s_mov_b32 s57, 0\ns_branch cB")
    A("cO:"); stamp(A, 0); publish(A, "cO")
    A("s_lshl_b32 s45, s40, 2\ns_add_u32 s45, s45, s41\ns_sub_u32 s45, s45, 12\ns_and_b32 s43, s45, 7\ns_lshr_b32 s44, s45, 3")
    srd(A, 16, 14, SZ_KVP, WS_KVP); srd(A, 20, 14, SZ_X, WS_PQ); srd(A, 24, 14, SZ_X, WS_OT)
    A(f"s_lshl_b32 s60, s43, 2\ns_add_u32 s60, s60, s44\ns_mul_i32 s60, s60, {ZS}\ns_add_u32 s60, s60, {8*ZS}\ns_mul_i32 s58, s44, {2*ZS}\ns_add_u32 s58, s58, {232*ZS}\ns_mov_b32 s59, 3\ns_mov_b32 s57, 0\nv_mov_b32 v34, 0")
    poll_check(A, "cO", "s60", 32, 8, "s42"); A("s_barrier")
    o_cons(A); A("s_branch cC")
    A(f"ckv:\ns_mul_i32 s56, s44, {4*ZS}\ns_add_u32 s56, s56, {8*ZS}\ns_mov_b32 s57, 15\ns_mov_b32 s58, {168*ZS}\ns_mov_b32 s59, 0")
    A("s_or_b32 s45, s2, s42\ns_cmp_lg_u32 s45, 0\ns_cbranch_scc1 ckv2\ns_waitcnt lgkmcnt(0)")
    srd(A, 8, 14, 256*ZS, WS_Z); srd(A, 24, 94, 256)
    A(f"v_mul_u32_u24 v2, {ZS}, v1\nv_mov_b32 v3, 0\nbuffer_store_dword v3, v2, s[8:11], 0 offen sc1\ns_mov_b32 s45, {64*ZS}\nbuffer_store_dword v3, v2, s[8:11], s45 offen sc1\ns_mov_b32 s45, {128*ZS}\nbuffer_store_dword v3, v2, s[8:11], s45 offen sc1\ns_mov_b32 s45, {192*ZS}\nbuffer_store_dword v3, v2, s[8:11], s45 offen sc1\nv_lshlrev_b32 v2, 7, v1\nv_mov_b32 v4, 1\ns_waitcnt vmcnt(0)\nbuffer_store_dword v4, v2, s[24:27], 0 offen sc1\nckv2:")
    a_cons(A, "kv")
    A("s_cmp_eq_u32 s98, 1\ns_cbranch_scc1 cO\ns_cmp_eq_u32 s98, 2\ns_cbranch_scc1 cC")
    A("cB:")
    def midB():
        srd(A, 24, 14, SZ_UW, WS_UW); srd(A, 28, 86, 1728*2)
        A("s_and_b32 s45, s42, 1\ns_lshl_b32 s45, s45, 6\ns_lshr_b32 s46, s42, 1\ns_lshl_b32 s46, s46, 5\ns_add_u32 s45, s45, s46\ns_lshl_b32 s47, s96, 7\ns_add_u32 s45, s45, s47\nv_lshrrev_b32 v2, 4, v1\nv_lshlrev_b32 v2, 3, v2\nv_add_u32 v2, s45, v2")
        A("buffer_load_dwordx2 v[18:19], v2, s[28:31], 0 offen")
        A(f"v_subrev_u32 v2, s47, v2\nv_and_b32 v3, 15, v1\nv_mul_u32_u24 v3, 144, v3\nv_add_u32 v3, {XB+36864}, v3\nv_add_u32 v16, v2, v3")
        A(f"v_lshrrev_b32 v2, 3, v0\nv_and_b32 v3, 7, v0\nv_mul_u32_u24 v14, 144, v2\nv_lshl_add_u32 v14, v3, 4, v14\nv_add_u32 v14, {XB+36864}, v14")
        A(f"s_mul_i32 s45, s97, 80\nv_add_u32 v2, s45, v2\nv_mul_u32_u24 v2, 4736, v2\nv_lshl_add_u32 v2, v3, 4, v2\nv_add_u32 v15, s47, v2\nv_mov_b32 v3, {OOB}\nv_cmp_gt_u32 vcc, 128, v0\nv_cndmask_b32 v17, v3, v15, vcc")
    core_cons(A, "cB", 32, True, 1, None, midB)
    c0 = -2*0.7978845608028654*LOG2E
    A(f"s_mul_i32 s45, s97, {8*ZS}\ns_add_u32 s56, s45, s58\ns_cmp_eq_u32 s58, {168*ZS}\ns_cselect_b32 s57, 0, 255\ns_cmp_eq_u32 s58, {104*ZS}\ns_cselect_b32 s59, 0, 255\ns_add_u32 s58, s45, {168*ZS}")
    A(f"s_mov_b32 s62, {f2u(c0*0.044715)}\nv_mov_b32 v9, {f2u(c0)}\ns_mov_b32 s46, 0")
    for h in range(2): A(f"v_lshlrev_b32 v{32+2*h}, 16, v{18+h}\nv_and_b32 v{33+2*h}, 0xffff0000, v{18+h}")
    for r in range(20): A(f"v_add_f32 v{96+r}, v{96+r}, v{32+(r&3)}")
    for r in range(20): A(f"v_mul_f32 v{48+r}, v{96+r}, v{96+r}")
    for r in range(20): A(f"v_fma_f32 v{48+r}, v{48+r}, s62, v9")
    for r in range(20): A(f"v_mul_f32 v{48+r}, v{48+r}, v{96+r}")
    for r in range(20): A(f"v_exp_f32 v{48+r}, v{48+r}")
    for r in range(20): A(f"v_add_f32 v{48+r}, 1.0, v{48+r}")
    for rt in range(5):
        for r in range(4*rt, 4*rt+4): A(f"v_rcp_f32 v{48+r}, v{48+r}")
        for r in range(4*rt, 4*rt+4): A(f"v_mul_f32 v{96+r}, v{96+r}, v{48+r}")
        A(f"v_cvt_pk_bf16_f32 v{70+2*rt}, v{96+4*rt}, v{97+4*rt}\nv_cvt_pk_bf16_f32 v{71+2*rt}, v{98+4*rt}, v{99+4*rt}")
        A(f"ds_write_b64 v16, {vr(70+2*rt,2)} offset:{16*144*rt}")
    A("s_waitcnt lgkmcnt(0)\ns_barrier")
    for i in range(3): A(f"ds_read_b128 {vr(48+4*i,4)}, v14 offset:{32*144*i}")
    for i in range(3): A(f"s_waitcnt lgkmcnt({2-i})\nbuffer_store_dwordx4 {vr(48+4*i,4)}, v{17 if i == 2 else 15}, s[24:27], s46 offen sc1\ns_add_u32 s46, s46, {32*4736}")
    stamp_out(A, 1)
    A("cC:")
    def midC():
        srd(A, 24, 92, SZ_X); srd(A, 28, 4, SZ_X); srd(A, 32, 90, 4096)
        A("s_lshl_b32 s45, s40, 2\ns_and_b32 s46, s41, 3\ns_add_u32 s45, s45, s46\ns_lshl_b32 s45, s45, 6\ns_and_b32 s46, s42, 1\ns_lshl_b32 s46, s46, 5\ns_add_u32 s45, s45, s46\ns_lshr_b32 s46, s42, 1\ns_lshl_b32 s46, s46, 4\ns_add_u32 s45, s45, s46\nv_and_b32 v2, 15, v1\nv_add_u32 v2, s45, v2\nv_lshlrev_b32 v3, 1, v2")
        A("v_mul_u32_u24 v16, 1280, v2\nv_lshrrev_b32 v4, 4, v1\nv_lshl_add_u32 v16, v4, 3, v16\ns_lshr_b32 s45, s41, 2\ns_mul_i32 s45, s45, 160\nv_add_u32 v16, s45, v16")
        for rt in range(5): A(f"buffer_load_dwordx2 {vr(82+2*rt,2)}, v16, s[28:31], 0 offen offset:{32*rt}")
        A("buffer_load_ushort v92, v3, s[32:35], 0 offen")
    def pubC():
        A(f"s_cmp_lg_u32 s59, 0\ns_cselect_b32 s60, {opt('defat', 1)}, 0\ns_cmp_lg_u32 s98, 3\ns_cbranch_scc1 cC_nw"); aux_wo(A); A("cC_nw:")
    core_cons(A, "cC", 37, False, 2, pubC, midC)
    A("v_lshlrev_b32 v92, 16, v92")
    for rt in range(5):
        a = 96+4*rt; x = 82+2*rt; t = 32+4*rt
        for h in range(2): A(f"v_lshlrev_b32 v{t+2*h}, 16, v{x+h}\nv_and_b32 v{t+2*h+1}, 0xffff0000, v{x+h}")
        for r in range(4): A(f"v_add_f32 v{a+r}, v{a+r}, v92")
        for r in range(4): A(f"v_add_f32 v{a+r}, v{a+r}, v{t+r}")
        A(f"v_cvt_pk_bf16_f32 v{x}, v{a}, v{a+1}\nv_cvt_pk_bf16_f32 v{x+1}, v{a+2}, v{a+3}")
        A(f"buffer_store_dwordx2 {vr(x,2)}, v16, s[24:27], 0 offen offset:{32*rt}")
    stamp_out(A, 2)
    A("k_end:\ns_endpgm\ncC_def:\ns_waitcnt vmcnt(0)"); atom(A, None, 58, 59); A("s_branch cCd_np")

KN = "m_kernel"
def build():
    assert all((c*3277)>>16 == c//20 for c in range(1280)) and all((c*6554)>>16 == c//10 for c in range(1280)) and all((c*52)>>8 == c//5 for c in range(25)) and all((c*4370)>>16 == c//15 for c in range(256))
    A = Asm(); main(A)
    hdr = "; generated by gen2.py (hand-written generator): one launch, per-workgroup job chain (qkv|LN) -> (token GEMM1|attn normalise) -> GEMM2+out-proj\n"
    hdr += f"; @launch kernel={KN} grid=(256,1,1) block=(512,1,1) lds=163840\n"
    hdr += '.amdgcn_target "amdgcn-amd-amdhsa--gfx950"\n.text\n'
    return hdr + A.finish() + f""".section .rodata,"a"
.p2align 6
.amdhsa_kernel {KN}
  .amdhsa_next_free_vgpr 256
  .amdhsa_next_free_sgpr 100
  .amdhsa_accum_offset 256
  .amdhsa_group_segment_fixed_size 0
  .amdhsa_kernarg_size 88
  .amdhsa_user_sgpr_count 2
  .amdhsa_user_sgpr_kernarg_segment_ptr 1
  .amdhsa_system_sgpr_workgroup_id_x 1
.end_amdhsa_kernel
"""
if __name__ == "__main__":
    STAMP = "stamp" in sys.argv
    out = sys.argv[1] if len(sys.argv) > 1 else f"cdna_kernels/{NAME}.s"
    open(out, "w").write(build())
```

```python
import sys
from asmlib import Asm
NAME = "parallel_sum__linear_attn_block__mixer_token_mlp__prompt"
WS_HT, WS_PQ, WS_UW, WS_OT, WS_KVP = 0xC00000, 0x280000, 0x500000, 0x800000, 0xB00000
SZ_X = 2048*640*2; SZ_WQKV = 640*1920*2; SZ_WO = 640*640*2; SZ_W1 = 2048*1728*2; SZ_W2 = SZ_W1
SZ_UW = 640*4736; SZ_KVP = 128*6720
OOB = 0x40000000
LOG2E = 1.4426950408889634
import struct, os
OPT = dict(kv.split('=') for kv in os.environ.get('GOPT','').split(',') if kv)
def opt(k, d): return int(OPT.get(k, d))
HTP = opt('htp', 4096); P2M = opt('p2m', 2); PF0 = opt('pf0', 1)
def f2u(x): return "0x%08x" % struct.unpack("<I", struct.pack("<f", x))[0]

def srd(A, d, p, size, off=0):
    if off:
        A(f"s_add_u32 s{d}, s{p}, {off}\ns_addc_u32 s{d+1}, s{p+1}, 0")
    else:
        A(f"s_mov_b32 s{d}, s{p}\ns_mov_b32 s{d+1}, s{p+1}")
    A(f"s_mov_b32 s{d+2}, {size}\ns_mov_b32 s{d+3}, 0x00020000")
def vr(b, n): return f"v[{b}:{b+n-1}]"
def sr(b, n=4): return f"s[{b}:{b+n-1}]"
XB = 110592; P0_X = XB + 28672; NS0 = 3; P0_SLOT = 36864; NSL = 3; SUB = 18432; CSLOT = 2*SUB
def bf16r(A, d, s):
    A(f"v_cvt_pk_bf16_f32 v{d}, v{s}, v{s}\nv_and_b32 v{d}, 0xffff0000, v{d}")
def halfsum(A, r, t):
    A(f"v_mov_b32 v{t}, v{r}\nv_permlane32_swap_b32 v{t}, v{r}\nv_add_f32 v{r}, v{t}, v{r}")
def ln_scalars(A, sx, sxx, mb, rs, t):
    A(f"v_mul_f32 v{sx}, {f2u(1/640)}, v{sx}\nv_mul_f32 v{sxx}, {f2u(1/640)}, v{sxx}")
    A(f"v_fma_f32 v{sxx}, -v{sx}, v{sx}, v{sxx}\nv_max_f32 v{sxx}, 0, v{sxx}")
    bf16r(A, mb, sx); bf16r(A, t, sxx)
    A(f"v_add_f32 v{t}, {f2u(1e-5)}, v{t}"); bf16r(A, t, t)
    A(f"v_sqrt_f32 v{t}, v{t}"); bf16r(A, t, t)
    A(f"v_rcp_f32 v{rs}, v{t}")


STAMP = False
WS_ST = 0x1000000
def stamp(A, idx):
    if STAMP: A(f"s_memrealtime s[{64+2*idx}:{65+2*idx}]")
def stamp_out(A, kid, n=6):
    if not STAMP: return
    A(f"s_memrealtime s[{64+2*(n-1)}:{65+2*(n-1)}]\ns_waitcnt lgkmcnt(0)")
    srd(A, 76, 14, 1<<20, WS_ST)
    A(f"s_add_u32 s45, s2, {kid*256}\ns_lshl_b32 s45, s45, 3\ns_add_u32 s45, s45, s42\ns_lshl_b32 s45, s45, 6\nv_mov_b32 v2, s45")
    A("s_mov_b64 exec, 1")
    for i in range(n): A(f"v_mov_b32 v3, s{64+2*i}\nbuffer_store_dword v3, v2, s[76:79], 0 offen offset:{4*i}")
    A("s_mov_b64 exec, -1")
def bulk(A, t):
    A(f"v_mul_u32_u24 v2, 4370, v{t}\nv_lshrrev_b32 v2, 16, v2\nv_mul_u32_u24 v3, 15, v2\nv_sub_u32 v3, v{t}, v3")
    A("v_mul_u32_u24 v4, 52, v3\nv_lshrrev_b32 v4, 8, v4\nv_mul_u32_u24 v4, 640, v4\nv_lshl_add_u32 v3, v3, 7, v4")
    A("s_mul_i32 s45, s41, 17\ns_add_u32 s46, s45, 128\nv_add_u32 v2, s46, v2\nv_mul_u32_u24 v2, 3840, v2\nv_add_u32 v2, v2, v3\ns_and_b32 s46, s40, 1\ns_mul_i32 s46, s46, 640\nv_add_u32 v2, s46, v2")
    A("buffer_load_dword v250, v2, s[20:23], 0 offen")
    return 1
def a_cons(A, kind):
    L = f"p0{kind}"
    A("s_lshl_b32 s60, s42, 12")
    A("v_and_b32 v2, 31, v1\nv_lshrrev_b32 v3, 5, v1\nv_lshrrev_b32 v4, 1, v2\nv_and_b32 v4, 7, v4")
    A("v_lshlrev_b32 v5, 7, v2\nv_add_u32 v5, s60, v5")
    A("v_bfe_u32 v6, v1, 2, 2\nv_lshl_add_u32 v6, v3, 3, v6\nv_mul_u32_u24 v6, 320, v6")
    A("v_bfe_u32 v7, v1, 4, 1\nv_lshlrev_b32 v7, 5, v7\nv_and_b32 v8, 3, v1\nv_lshl_add_u32 v7, v8, 3, v7\nv_add_u32 v6, v6, v7\nv_add_u32 v6, 16384, v6")
    for jj in range(4):
        A(f"s_add_u32 s45, s42, {jj}\ns_and_b32 s45, s45, 3\ns_lshl_b32 s46, s45, 1\ns_mul_i32 s45, s45, 5120")
        A(f"v_add_u32 v7, s46, v3\nv_xor_b32 v7, v7, v4\nv_lshl_add_u32 v{20+jj}, v7, 4, v5\nv_add_u32 v{24+jj}, s45, v6")
        A(f"v_mov_b32 v{28+jj}, v{20+jj}\nv_mov_b32 v{32+jj}, v{24+jj}")
    A("s_mov_b32 s55, 0x3f803f80\ns_mov_b32 s50, 0\ns_mov_b32 s54, 0")
    for r in list(range(96, 176)) + list(range(180, 200)): A(f"v_mov_b32 v{r}, 0")
    A("v_and_b32 v2, 15, v1\nv_bfe_u32 v3, v1, 4, 1\nv_cmp_eq_u32 vcc, v2, v3\nv_mov_b32 v4, s55")
    for r in range(4): A(f"v_cndmask_b32 v{44+r}, 0, v4, vcc")
    SET = [48, 72]
    def rlist(jj):
        b = SET[jj & 1]
        R = [f"ds_read_b128 {vr(b,4)}, v{28+jj}"]
        for n in range(5):
            for hh in range(2):
                R.append(f"ds_read_b64_tr_b16 {vr(b+4+4*n+2*hh,2)}, v{32+jj} offset:{hh*1280+n*64}")
        return R
    def reads(jj):
        for r in rlist(jj): A(r)
    A("s_waitcnt lgkmcnt(0)")
    srd(A, 24, 14, *( (SZ_KVP, WS_KVP) if kind == 'kv' else (SZ_X, WS_PQ)))
    stamp(A, 1)
    A("s_barrier")
    stamp(A, 2)
    reads(0)
    A(f"{L}_loop:")
    A(f"s_add_u32 s50, s50, 1\ns_add_u32 s54, s54, {P0_SLOT}\ns_cmp_ge_u32 s54, {NS0*P0_SLOT}\ns_cselect_b32 s54, 0, s54")
    for jj in range(4):
        b = SET[jj & 1]
        FINE = opt('fine', 1)
        P0R = ([4,4,3,0,0] if jj == 2 else [3,2,2,2,2]) if FINE else [3,3,3,2,0]
        if jj == 3 or not FINE: A("s_waitcnt lgkmcnt(0)")
        if jj == 3: A("s_barrier")
        R = rlist((jj+1) & 3)
        dots = ["", "", ""]

        j2 = {0: [0], 1: [1], 2: [2], 3: [3]}[jj]
        for j in j2: dots.append(f"v_add_u32 v{28+j}, s54, v{20+j}"); dots.append(f"v_add_u32 v{32+j}, s54, v{24+j}")
        per = (len(dots)+4)//5
        for n in range(5):
            acc = vr(96+16*n, 16)
            if FINE and jj < 3: A(f"s_waitcnt lgkmcnt({2*(4-n)+sum(P0R[:n])})")
            if STAMP and opt('nomf', 0) and n: pass
            elif kind == "kv": A(f"v_mfma_f32_32x32x16_bf16 {acc}, {vr(b,4)}, {vr(b+4+4*n,4)}, {acc}")
            else: A(f"v_mfma_f32_32x32x16_bf16 {acc}, {vr(b+4+4*n,4)}, {vr(b,4)}, {acc}")
            for _ in range(P0R[n]): A(R.pop(0))
            for d in dots[n*per:(n+1)*per]:
                if d: A(d)
            if jj == 0: A(f"v_mfma_f32_16x16x32_bf16 {vr(180+4*n,4)}, v[44:47], {vr(b+4+4*n,4)}, {vr(180+4*n,4)}")
    A(f"s_cmp_lt_u32 s50, 10\ns_cbranch_scc1 {L}_loop\ns_waitcnt lgkmcnt(0)\ns_nop 2")
    stamp(A, 3)
    A(f"v_lshlrev_b32 v2, 2, v1\ns_mul_i32 s45, s42, 768\nv_add_u32 v3, s45, v2\nv_add_u32 v3, {P0_X}, v3")
    A("s_mov_b64 exec, 0xffff")
    for n in range(5):
        src = 180+4*n
        A(f"ds_write2_b32 v3, v{src}, v{src+1} offset0:{32*n} offset1:{32*n+16}")
    A(f"s_mov_b64 exec, -1\nv_and_b32 v2, 31, v1\nv_lshlrev_b32 v2, 2, v2\nv_add_u32 v2, {P0_X}, v2\ns_lshl_b32 s45, s42, 8\nv_add_u32 v3, s45, v2\nds_read_b32 v37, v3 offset:3072\nds_read_b32 v39, v3 offset:3200")
    A("s_waitcnt vmcnt(0) lgkmcnt(0)\ns_barrier")
    for n in range(5):
        for w in range(4): A(f"ds_read_b32 v{48+4*n+w}, v2 offset:{w*768+n*128}")
    A("v_lshrrev_b32 v5, 16, v37\nv_or_b32 v72, v5, v37\nv_xor_b32 v72, 0x80008000, v72\nv_mov_b32 v73, 0\nv_mov_b32 v74, 0\nv_mov_b32 v75, 0")
    A("v_cmp_gt_u32 vcc, 32, v1")
    if kind == "kv":
        A(f"v_lshrrev_b32 v4, 5, v1\nv_lshlrev_b32 v4, 4, v4\nv_add_u32 v4, s45, v4\nv_add_u32 v4, {P0_X+3200}, v4")
        for q in range(4): A(f"ds_read_b128 {vr(176+4*q,4)}, v4 offset:{32*q}")
    A(f"s_waitcnt lgkmcnt({4 if kind == 'kv' else 0})")
    for n in range(5):
        b = 48+4*n
        A(f"v_add_f32 v{b}, v{b}, v{b+1}\nv_add_f32 v{b+2}, v{b+2}, v{b+3}\nv_add_f32 v{b}, v{b}, v{b+2}")
        bf16r(A, b+1, b)
        A(f"v_sub_f32 v{b+2}, v{b}, v{b+1}\nv_cvt_pk_bf16_f32 v{b}, v{b+1}, v{b+2}\nv_cndmask_b32 v{b}, 0, v{b}, vcc")
        A(f"v_mov_b32 v{b+1}, 0\nv_mov_b32 v{b+2}, 0\nv_mov_b32 v{b+3}, 0")
    for n in range(5):
        acc = vr(96+16*n, 16)
        if kind == "kv": A(f"v_mfma_f32_32x32x16_bf16 {acc}, v[72:75], {vr(48+4*n,4)}, {acc}")
        else: A(f"v_mfma_f32_32x32x16_bf16 {acc}, {vr(48+4*n,4)}, v[72:75], {acc}")
    A(f"s_mov_b32 s62, {f2u(1e-6)}\ns_mov_b32 s63, {f2u(LOG2E)}\nv_mov_b32 v9, s62")
    def phi(r, rsreg, t, keep=None):
        if keep is not None: A(f"v_mul_f32 v{keep}, v{r}, v{rsreg}")
        A(f"v_fma_f32 v{r}, v{r}, v{rsreg}, v9\nv_mul_f32 v{t}, s63, v{r}\nv_exp_f32 v{t}, v{t} clamp\nv_max_f32 v{r}, s62, v{r}\nv_add_f32 v{r}, v{r}, v{t}")
    if kind == "q":
        A("s_lshl_b32 s45, s44, 7\ns_lshl_b32 s46, s43, 2\ns_add_u32 s45, s45, s46\ns_add_u32 s45, s45, s42\ns_mul_i32 s45, s45, 5120\nv_lshlrev_b32 v2, 4, v1\nv_add_u32 v3, 4096, v2")
        A(f"s_add_u32 s46, s45, {64*5120}")
        for n in range(5):
            for qq in range(2):
                a = 96+16*n+8*qq; o = 176+8*n+4*qq
                for r in range(8): phi(a+r, 39, 4+(r&3))
                for r in range(4): A(f"v_cvt_pk_bf16_f32 v{o+r}, v{a+2*r}, v{a+2*r+1}")
                A(f"v_permlane32_swap_b32 v{o}, v{o+2}\nv_permlane32_swap_b32 v{o+1}, v{o+3}")
                jj = 2*n+qq; A(f"buffer_store_dwordx4 {vr(o,4)}, v{3 if jj%5 == 4 else 2}, s[24:27], s{45+jj//5} offen offset:{1024*(jj%5&3)} sc1")
        stamp_out(A, 0)
        return
    A("s_waitcnt lgkmcnt(0)")
    A("v_and_b32 v2, 31, v1\nv_cmp_gt_u32 vcc, 16, v2")
    for n in range(5):
        for r in range(16):
            a = 96+16*n+r
            if n < 2: phi(a, 176+r, 4+(r&3))
            elif n == 2:
                phi(a, 176+r, 4+(r&1), keep=6+(r&1)); A(f"v_cndmask_b32 v{a}, v{6+(r&1)}, v{a}, vcc")
            else: A(f"v_mul_f32 v{a}, v{a}, v{176+r}")
        for r in range(8): A(f"v_cvt_pk_bf16_f32 v{48+8*n+r}, v{96+16*n+2*r}, v{96+16*n+2*r+1}")
    for r in range(4): A(f"v_mov_b32 v{88+r}, s55")
    prods = [(0,2),(0,3),(1,3),(1,4),(2,4)]
    for pi,(dt,et) in enumerate(prods):
        acc = vr(96+16*pi,16)
        A(f"v_mfma_f32_32x32x16_bf16 {acc}, {vr(48+8*dt,4)}, {vr(48+8*et,4)}, 0")
        A(f"v_mfma_f32_32x32x16_bf16 {acc}, {vr(52+8*dt,4)}, {vr(52+8*et,4)}, {acc}")
    for dt in range(3):
        acc = vr(176+16*dt,16)
        A(f"v_mfma_f32_32x32x16_bf16 {acc}, {vr(48+8*dt,4)}, v[88:91], 0")
        A(f"v_mfma_f32_32x32x16_bf16 {acc}, {vr(52+8*dt,4)}, v[88:91], {acc}")
    A("s_mul_i32 s45, s42, 7168\ns_add_u32 s45, s45, "+str(XB)+"\nv_lshrrev_b32 v3, 5, v1\nv_lshlrev_b32 v3, 2, v3\nv_mov_b32 v8, s45\nv_add_u32 v8, 6912, v8")
    for et in (2,3,4):
        A(f"v_add_u32 v4, {32*et-80}, v2")
        A(f"v_mul_i32_i24 v{10+et}, 80, v4\nv_add_u32 v{10+et}, s45, v{10+et}")
        A(f"v_mul_i32_i24 v5, 3277, v4\nv_ashrrev_i32 v5, 16, v5\nv_mul_i32_i24 v5, 20, v5\nv_sub_u32 v{16+et}, v3, v5")
    for pi,(dt,et) in enumerate(prods):
        for q in range(4):
            t = 24+(q&1)*2
            A(f"v_add_u32 v{t}, {32*dt+8*q}, v{16+et}\nv_cmp_gt_u32 vcc, 20, v{t}\nv_lshl_add_u32 v{t+1}, v{t}, 2, v{10+et}\nv_cndmask_b32 v{t+1}, v8, v{t+1}, vcc")
            A(f"ds_write_b128 v{t+1}, {vr(96+16*pi+4*q,4)}")
    A("v_lshlrev_b32 v4, 2, v3\nv_add_u32 v4, s45, v4")
    A("s_mov_b32 exec_lo, 1\ns_mov_b32 exec_hi, 1")
    for dt in range(3):
        for q in range(4):
            if 32*dt+8*q < 80: A(f"ds_write_b128 v4, {vr(176+16*dt+4*q,4)} offset:{6400+(32*dt+8*q)*4}")
    A("s_mov_b64 exec, -1\ns_waitcnt lgkmcnt(0)\ns_barrier")
    A(f"v_lshlrev_b32 v2, 4, v0\nv_add_u32 v6, {XB}, v2")
    for h in range(2):
        for w in range(4): A(f"ds_read_b128 {vr(48+16*h+4*w,4)}, v6 offset:{w*7168+h*4096}")
    A("s_lshl_b32 s45, s43, 3\ns_add_u32 s45, s45, s44\ns_mul_i32 s45, s45, 6720\nv_add_u32 v3, s45, v2")
    A(f"v_add_u32 v4, 4096, v3\nv_mov_b32 v5, {OOB}\nv_cmp_gt_u32 vcc, 164, v0\nv_cndmask_b32 v4, v5, v4, vcc")
    A("s_waitcnt lgkmcnt(0)")
    for h in range(2):
        b = 48+16*h
        for r in range(4): A(f"v_add_f32 v{b+r}, v{b+r}, v{b+4+r}\nv_add_f32 v{b+8+r}, v{b+8+r}, v{b+12+r}\nv_add_f32 v{b+r}, v{b+r}, v{b+8+r}")
        A(f"buffer_store_dwordx4 {vr(b,4)}, v{3+h}, s[24:27], 0 offen sc1")
    stamp_out(A, 0)

LAT = opt('lat', 0)
def aux_job(A):
    HP = 1312
    A("s_lshl_b32 s45, s43, 5\ns_lshl_b32 s46, s42, 2\ns_add_u32 s45, s45, s46")
    A("v_lshrrev_b32 v2, 4, v1\nv_add_u32 v3, s45, v2\nv_mul_u32_u24 v3, 1280, v3\nv_and_b32 v4, 15, v1\nv_lshl_add_u32 v3, v4, 4, v3\ns_waitcnt lgkmcnt(0)")
    srd(A, 16, 4, SZ_X)
    for i in range(5): A(f"buffer_load_dwordx4 {vr(16+4*i,4)}, v3, s[16:19], 0 offen offset:{256*i}")
    if opt('px', 0): A(f"s_xor_b32 s48, s43, 8\ns_mul_i32 s48, s48, 40960\nv_lshlrev_b32 v5, 7, v0\nv_mov_b32 v7, {OOB}\nv_cmp_gt_u32 vcc, 320, v0\nv_cndmask_b32 v5, v7, v5, vcc\nbuffer_load_dword v241, v5, s[16:19], s48 offen")
    srd(A, 24, 14, SZ_X+16384, WS_HT)
    if not LAT & 1:
        srd(A, 28, 12, SZ_WO)
        A("s_mul_i32 s48, s96, 102400\ns_mul_i32 s50, s97, 160\ns_add_u32 s48, s48, s50")
        for i in range(2):
            A(f"v_add_u32 v5, {512*i}, v0\nv_mul_u32_u24 v6, 6554, v5\nv_lshrrev_b32 v6, 16, v6\nv_mul_u32_u24 v6, 1120, v6\nv_lshl_add_u32 v6, v5, 4, v6")
            if i: A(f"v_mov_b32 v7, {OOB}\nv_cmp_gt_u32 vcc, 800, v5\nv_cndmask_b32 v6, v7, v6, vcc")
            A(f"s_lshl_b32 s50, s42, 10\ns_add_u32 m0, s50, {XB+20480+8192*i}\nbuffer_load_dwordx4 v6, s[28:31], s48 offen lds")
    if not LAT & 2:
        srd(A, 36, 84, SZ_W1)
        A("s_and_b32 s50, s41, 3\ns_lshl_b32 s50, s50, 9\nv_add_u32 v5, s50, v0\nv_mul_u32_u24 v5, 3456, v5\ns_lshl_b32 s50, s96, 7\nbuffer_load_dword v240, v5, s[36:39], s50 offen")
    A("s_mov_b32 s55, 0x3f803f80")
    A(f"v_add_u32 v5, s46, v2\nv_mul_u32_u24 v5, {HP}, v5\nv_lshl_add_u32 v5, v4, 4, v5")
    A(f"v_bfe_u32 v3, v1, 2, 2\nv_and_b32 v6, 3, v1\nv_lshl_add_u32 v7, v2, 3, v3\nv_mul_u32_u24 v7, {HP}, v7\nv_lshl_add_u32 v7, v6, 3, v7\ns_lshl_b32 s50, s42, 5\nv_add_u32 v7, s50, v7")
    A("v_lshlrev_b32 v40, 6, v4\nv_lshl_add_u32 v40, v2, 4, v40\ns_mul_i32 s50, s43, 40960\ns_lshl_b32 s51, s42, 10\ns_add_u32 s50, s50, s51")
    def red(r):
        for m in ("quad_perm:[1,0,3,2]", "quad_perm:[2,3,0,1]", "row_half_mirror", "row_mirror"):
            for q in r: A(f"v_add_f32_dpp v{q}, v{q}, v{q} {m} row_mask:0xf bank_mask:0xf")
    A(f"s_waitcnt vmcnt({opt('px', 0)+[3,1,2,0][LAT]})")
    stamp(A, 2)
    for ln in range(2):
        for r in range(8, 12): A(f"v_mov_b32 v{r}, 0")
        for r in range(20):
            A(f"v_dot2c_f32_bf16 v{8+(r&1)}, s55, v{16+r}\nv_dot2c_f32_bf16 v{10+(r&1)}, v{16+r}, v{16+r}")
        A("v_add_f32 v8, v8, v9\nv_add_f32 v10, v10, v11")
        red((8, 10))
        ln_scalars(A, 8, 10, 14, 12, 9)
        if ln == 0: A("v_add_u32 v9, s46, v2\nv_lshlrev_b32 v9, 2, v9\nv_add_u32 v9, 42240, v9\nds_write2_b32 v9, v14, v12 offset1:32")
        A("v_mul_f32 v14, v14, v12\nv_sub_f32 v14, 0, v14\nv_mov_b32 v13, v12\nv_mov_b32 v15, v14")
        for r in range(20):
            t = 60+2*(r&7)
            A(f"v_lshlrev_b32 v{t}, 16, v{16+r}\nv_and_b32 v{t+1}, 0xffff0000, v{16+r}")
            A(f"v_pk_fma_f32 {vr(t,2)}, {vr(t,2)}, v[12:13], v[14:15]\nv_cvt_pk_bf16_f32 v{16+r}, v{t}, v{t+1}")
    for i in range(5): A(f"ds_write_b128 v5, {vr(16+4*i,4)} offset:{256*i}")
    stamp(A, 3)
    A("s_waitcnt lgkmcnt(0)\ns_barrier")
    A(f"s_cmp_lg_u32 s42, 3\ns_cbranch_scc1 ax_ns\nv_lshlrev_b32 v9, 2, v1\nds_read_b32 v8, v9 offset:42240\ns_lshl_b32 s51, s43, 8\ns_add_u32 s51, s51, {SZ_X}\ns_waitcnt lgkmcnt(0)\nbuffer_store_dword v8, v9, s[24:27], s51 offen sc1\nax_ns:")
    for i in range(5):
        for hh in range(2): A(f"ds_read_b64_tr_b16 {vr(16+4*i+2*hh,2)}, v7 offset:{256*i+hh*4*HP}")
    for i in range(5):
        A(f"s_waitcnt lgkmcnt({8-2*i})\nbuffer_store_dwordx4 {vr(16+4*i,4)}, v40, s[24:27], s50 offen sc1\ns_add_u32 s50, s50, 8192")
def aux_wo(A):
    srd(A, 36, 14, SZ_UW, WS_UW)
    A(f"v_and_b32 v6, 3, v1\nv_and_b32 v4, 15, v1\nv_lshrrev_b32 v2, 4, v1\nv_bfe_u32 v3, v1, 2, 2\nv_lshl_add_u32 v8, v2, 2, v3\nv_mul_u32_u24 v8, 160, v8\nv_lshl_add_u32 v8, v6, 3, v8\nv_add_u32 v8, {XB+20480}, v8")
    A("v_mul_u32_u24 v9, 4736, v4\nv_lshl_add_u32 v9, v2, 3, v9\ns_mul_i32 s49, s97, 378880\ns_mul_i32 s44, s96, 160\ns_add_u32 s49, s49, s44\ns_add_u32 s49, s49, 3456\nv_add_u32 v9, s49, v9")
    for m in range(7):
        A(f"s_add_u32 s44, s42, {4*m}\ns_min_u32 s44, s44, 24\ns_mul_i32 s51, s44, 52\ns_lshr_b32 s51, s51, 8\ns_mul_i32 s52, s51, 5\ns_sub_u32 s52, s44, s52")
        A(f"s_mul_i32 s53, s52, 2560\ns_lshl_b32 s47, s51, 5\ns_add_u32 s53, s53, s47\nv_add_u32 v10, s53, v8\nds_read_b64_tr_b16 {vr(60+2*m,2)}, v10")
        A(f"s_mul_i32 s53, s51, {16*4736}\ns_lshl_b32 s47, s52, 5\ns_add_u32 s53, s53, s47\nv_add_u32 v{50+m}, s53, v9")
    A("s_waitcnt lgkmcnt(0)")
    for m in range(7): A(f"buffer_store_dwordx2 {vr(60+2*m,2)}, v{50+m}, s[36:39], 0 offen sc1")
def core_cons(A, L, NK, t_is_A, slot0, pub, mid):
    NS = (NK+1)//2
    stamp(A, 0)
    A(f"s_and_b32 s45, s42, 1\ns_lshl_b32 s45, s45, 1\ns_lshr_b32 s46, s42, 1\ns_or_b32 s45, s45, s46\ns_mul_i32 s46, s46, {SUB}")
    A("v_lshrrev_b32 v2, 4, v1\nv_bfe_u32 v3, v1, 2, 2\nv_and_b32 v4, 3, v1\nv_lshl_add_u32 v5, v2, 3, v3\nv_lshlrev_b32 v5, 7, v5\nv_lshl_add_u32 v5, v4, 3, v5\nv_add_u32 v5, s46, v5")
    A("v_lshrrev_b32 v6, 1, v3\nv_and_b32 v7, 1, v2\nv_lshl_or_b32 v6, v7, 1, v6\nv_xor_b32 v6, s45, v6\nv_lshl_add_u32 v20, v6, 5, v5\nv_xor_b32 v6, 1, v6\nv_lshl_add_u32 v21, v6, 5, v5")
    A("s_add_u32 s46, s46, 8192\nv_and_b32 v3, 15, v1\nv_lshrrev_b32 v4, 1, v3\nv_xor_b32 v4, v4, v2\nv_lshlrev_b32 v5, 7, v3\nv_add_u32 v5, s46, v5\nv_lshl_add_u32 v22, v4, 4, v5\nv_xor_b32 v4, 4, v4\nv_lshl_add_u32 v23, v4, 4, v5")
    for r in range(96, 136): A(f"v_mov_b32 v{r}, 0")
    SET = [136, 192]
    def readlist(p):
        b = SET[p]; R = []
        for ks in range(2):
            for tt in range(2):
                for hh in range(2): R.append(f"ds_read_b64_tr_b16 {vr(b+8*ks+4*tt+2*hh,2)}, v{24+tt} offset:{ks*4096+hh*512}")
            for rt in range(5): R.append(f"ds_read_b128 {vr(b+16+20*ks+4*rt,4)}, v{26+ks} offset:{2048*rt}")
        return R
    def radv():
        for j in range(4): A(f"v_add_u32 v{24+j}, s54, v{20+j}")
        A(f"s_add_u32 s54, s54, {CSLOT}\ns_cmp_ge_u32 s54, {NSL*CSLOT}\ns_cselect_b32 s54, 0, s54")
    A(f"s_mov_b32 s54, {slot0*CSLOT}\ns_mov_b32 s50, 0")
    radv()
    stamp(A, 1)
    if pub:
        A(f"s_cmp_lg_u32 s98, 1\ns_cbranch_scc1 {L}_no\ns_waitcnt vmcnt(0)"); atom(A, None, 58, 59); A(f"s_mov_b32 s59, 0\n{L}_no:")
    publish(A, L)
    mid()
    if pub: pub()
    stamp(A, 4)
    A("s_barrier\ns_barrier")
    stamp(A, 2)
    for r in readlist(0): A(r)
    radv()
    def body(p):
        b = SET[p]
        if pub and p: A(f"s_cmp_eq_u32 s50, s60\ns_cbranch_scc1 {L}_def\n{L}d_np:")
        A(f"s_waitcnt lgkmcnt(0)\ns_barrier")
        R = readlist(1-p); i = 0
        for ks in range(2):
            for rt in range(5):
                for tt in range(2):
                    acc = vr(96+20*tt+4*rt, 4); T = vr(b+8*ks+4*tt, 4); K = vr(b+16+20*ks+4*rt, 4)
                    if t_is_A: A(f"v_mfma_f32_16x16x32_bf16 {acc}, {T}, {K}, {acc}")
                    else: A(f"v_mfma_f32_16x16x32_bf16 {acc}, {K}, {T}, {acc}")
                    for _ in range(RPM[i]):
                        if R: A(R.pop(0))
                    if i == 16: radv()
                    i += 1
        assert not R
        A("s_add_u32 s50, s50, 1")
    A(f"{L}_loop:")
    body(0)
    A(f"s_cmp_ge_u32 s50, {NS}\ns_cbranch_scc1 {L}_done")
    body(1)
    A(f"s_cmp_lt_u32 s50, {NS}\ns_cbranch_scc1 {L}_loop")
    A(f"{L}_done:\ns_waitcnt vmcnt(0) lgkmcnt(0)")
    stamp(A, 3)
    A(f"v_lshlrev_b32 v2, 4, v1\nv_add_u32 v2, {XB}, v2\ns_mul_i32 s45, s42, 5120\nv_add_u32 v3, s45, v2\ns_xor_b32 s46, s42, 2\ns_mul_i32 s46, s46, 5120\nv_add_u32 v4, s46, v2")
    for rt in range(5): A(f"ds_write_b128 v3, {vr(116+4*rt,4)} offset:{1024*rt}")
    A("s_waitcnt lgkmcnt(0)\ns_barrier")
    for rt in range(5): A(f"ds_read_b128 {vr(136+4*rt,4)}, v4 offset:{1024*rt}")
    A("s_waitcnt lgkmcnt(0)")
    for r in range(20): A(f"v_add_f32 v{96+r}, v{96+r}, v{136+r}")
RPM = [2,1,2,1,2,1,2,1,2,1,2,1,0,0,0,0,0,0,0,0]

def o_cons(A):
    PO = 176; OB = XB+4096
    A("s_mul_i32 s45, s43, 6720\nv_lshlrev_b32 v2, 4, v0\nv_add_u32 v3, s45, v2")
    A(f"v_add_u32 v4, 4096, v3\nv_mov_b32 v5, {OOB}\nv_cmp_gt_u32 vcc, 164, v0\nv_cndmask_b32 v4, v5, v4, vcc\ns_mov_b32 s46, 0")
    for i in range(16):
        A(f"buffer_load_dwordx4 {vr(96+8*i,4)}, v3, s[16:19], s46 offen sc1\nbuffer_load_dwordx4 {vr(100+8*i,4)}, v4, s[16:19], s46 offen sc1\ns_add_u32 s46, s46, {8*6720}")
    A("s_lshl_b32 s45, s43, 4\ns_lshl_b32 s46, s44, 2\ns_add_u32 s45, s45, s46\ns_add_u32 s45, s45, s42\ns_mul_i32 s45, s45, 20480\nv_lshlrev_b32 v7, 4, v1")
    for i in range(20):
        A(f"buffer_load_dwordx4 {vr(16+4*i,4)}, v7, s[20:23], s45 offen offset:{1024*(i&3)} sc1")
        if i & 3 == 3: A("s_add_u32 s45, s45, 4096")
    A("v_and_b32 v6, 31, v1\nv_lshrrev_b32 v8, 5, v1\nv_lshlrev_b32 v9, 3, v8\nv_mov_b32 v5, "+str(XB+3584))
    for et in range(3):
        A(f"v_add_u32 v2, {32*et}, v6\nv_mul_u32_u24 v{10+et}, 40, v2\nv_add_u32 v{10+et}, {XB}, v{10+et}\nv_mul_u32_u24 v3, 3277, v2\nv_lshrrev_b32 v3, 16, v3\nv_mul_u32_u24 v3, 20, v3\nv_sub_u32 v{13+et}, v9, v3")
    A("v_and_b32 v2, 3, v1\nv_bfe_u32 v3, v1, 3, 2\nv_lshl_add_u32 v2, v3, 2, v2\nv_and_b32 v3, 4, v1\nv_lshl_add_u32 v2, v2, 3, v3\nv_mul_u32_u24 v3, 3277, v2\nv_lshrrev_b32 v3, 16, v3\nv_mul_u32_u24 v3, 20, v3\nv_sub_u32 v252, v9, v3")
    steps = [(0,0),(0,1),(0,2),(1,1),(1,2),(1,3),(1,4),(2,3),(2,4)]
    AD = 224
    for i,(et,j) in enumerate(steps):
        for hq in range(2):
            A(f"v_add_u32 v2, {16*j+4*hq}, v{13+et}\nv_lshl_add_u32 v3, v2, 1, v{10+et}\nv_cmp_gt_u32 vcc, 20, v2\nv_cndmask_b32 v{AD+2*i+hq}, v5, v3, vcc")
    for j in range(5):
        for hq in range(2):
            dq = 16*j+4*hq
            A(f"v_add_u32 v2, {dq}, v252\nv_lshlrev_b32 v3, 1, v9\nv_add_u32 v3, {XB+3200+2*dq}, v3\nv_cmp_gt_u32 vcc, 20, v2\nv_cndmask_b32 v{AD+18+2*j+hq}, v5, v3, vcc")
    stamp(A, 1)
    for i in range(1, 16):
        A(f"s_waitcnt vmcnt({20+2*(15-i)})")
        for r in range(4): A(f"v_pk_add_f32 {vr(96+2*r,2)}, {vr(96+2*r,2)}, {vr(96+8*i+2*r,2)}")
    stamp(A, 2)
    for r in range(4): A(f"v_cvt_pk_bf16_f32 v{104+r}, v{96+2*r}, v{96+2*r+1}")
    A(f"v_lshlrev_b32 v2, 3, v0\nv_add_u32 v2, {XB}, v2\nds_write_b64 v2, v[104:105]\nds_write_b64 v2, v[106:107] offset:2048")
    A("s_waitcnt lgkmcnt(0)\ns_barrier")
    for i in range(28): A(f"ds_read_b64 {vr(96+2*i,2)}, v{AD+i}")
    for r in range(16): A(f"v_mov_b32 v{152+r}, {f2u(1e-6)}")
    A(f"s_mul_i32 s45, s42, {64*PO}\ns_add_u32 s45, s45, {OB}\nv_mul_u32_u24 v2, {PO}, v6\nv_add_u32 v2, s45, v2\nv_add_u32 v2, v2, v9")
    A(f"v_lshrrev_b32 v3, 4, v1\nv_bfe_u32 v4, v1, 1, 1\nv_lshl_add_u32 v3, v3, 1, v4\nv_bfe_u32 v4, v1, 2, 2\nv_lshl_add_u32 v5, v3, 3, v4\nv_mul_u32_u24 v5, {PO}, v5\nv_and_b32 v4, 1, v1\nv_lshl_add_u32 v5, v4, 3, v5\nv_add_u32 v5, s45, v5")
    A("s_mul_i32 s46, s43, 80\nv_and_b32 v7, 7, v1\nv_add_u32 v7, s46, v7\nv_lshlrev_b32 v7, 12, v7\nv_lshrrev_b32 v3, 3, v1\nv_lshl_add_u32 v7, v3, 4, v7\ns_lshl_b32 s46, s44, 10\ns_lshl_b32 s47, s42, 8\ns_add_u32 s46, s46, s47\nv_add_u32 v7, s46, v7")
    A("s_waitcnt vmcnt(0) lgkmcnt(0)")
    stamp(A, 3)
    N = [168, 184, 200]; D = 216
    def fin(b, et):
        R = 232+10*(b&1); W = []
        for q in range(4 if et < 2 else 2):
            n = N[et]+4*q
            W += [f"v_mul_f32 v{n+c}, v{n+c}, v{R+4*et+q}" for c in range(4)]
            W += [f"v_cvt_pk_bf16_f32 v{n}, v{n}, v{n+1}", f"v_cvt_pk_bf16_f32 v{n+1}, v{n+2}, v{n+3}", f"ds_write_b64 v2, {vr(n,2)} offset:{32*(b&1)*PO+64*et+16*q}"]
        return W
    def trr(h): return [f"ds_read_b64_tr_b16 {vr(16+40*h+4*i+2*hh,2)}, v5 offset:{4*hh*PO+16*i}" for i in range(10) for hh in range(2)]
    def sto(h):
        W = []
        for i in range(10): W += [f"s_mov_b32 s46, {32768*i}", f"buffer_store_dwordx4 {vr(16+40*h+4*i,4)}, v7, s[24:27], s46 offen offset:{128*h} sc1"]
        return W
    def emit(M, F, skip):
        per = -(-len(F)//max(1, len(M)-skip))
        for i, m in enumerate(M):
            A(m)
            if i >= skip:
                for f in F[(i-skip)*per:(i-skip+1)*per]: A(f)
    for b in range(4):
        pq = lambda j: vr(16+20*b+4*j, 4)
        emit([f"v_mfma_f32_32x32x16_bf16 {vr(D,16)}, {vr(132+4*j,4)}, {pq(j)}, {vr(D,16) if j else vr(152,16)}" for j in range(5)], fin(b-1,1)+fin(b-1,2) if b else [], 0)
        M = []
        for i,(et,j) in enumerate(steps):
            first = i == 0 or steps[i-1][0] != et
            M.append(f"v_mfma_f32_32x32x16_bf16 {vr(N[et],16)}, {vr(96+4*i,4)}, {pq(j)}, {'0' if first else vr(N[et],16)}")
        rc = [f"v_rcp_f32 v{232+10*(b&1)+r}, v{D+r}" for r in range(10)]
        emit(M[:4], (["s_waitcnt lgkmcnt(0)"]+trr(0) if b == 2 else []) + rc, 0 if b == 2 else 1)
        if b == 2: A("s_waitcnt lgkmcnt(0)")
        emit(M[4:], fin(b, 0) + (sto(0)[:10] if b == 2 else sto(0)[10:] if b == 3 else []), 0)
    for f in fin(3,1)+fin(3,2)+["s_waitcnt lgkmcnt(0)"]+trr(1)+["s_waitcnt lgkmcnt(0)"]+sto(1): A(f)
    stamp_out(A, 1)

class Stream:
    def __init__(s, A, items, adv, prep): s.A, s.items, s.adv, s.prep = A, items, adv, prep
    def issue(s, first=False):
        A = s.A
        for i, (v, sd, so, base, lo, mod) in enumerate(s.items):
            if first: s.prep(i)
            A(f"s_add_u32 m0, s{base}, {lo}\nbuffer_load_dwordx4 v{v}, {sr(sd)}, s{so} offen {mod}lds")
        A("s_add_u32 s58, s58, 1"); s.adv()
        A(f"s_add_u32 s59, s59, {CSLOT}\ns_cmp_ge_u32 s59, {3*CSLOT}\ns_cselect_b32 s59, 0, s59\ns_add_u32 s53, s59, s60\ns_add_u32 s57, s59, s61")
WS_Z = 0xF00000; ZS = 256
def poll_issue(A, L, off, sd=8, w="s49"):
    A(f"s_cmp_lg_u32 {w}, 0\ns_cbranch_scc1 {L}_pi\nbuffer_load_dword v34, off, {sr(sd)}, {off} sc1\n{L}_pi:")
def poll_check(A, L, off, tgt, sd=8, w="s49"):
    A(f"s_cmp_lg_u32 {w}, 0\ns_cbranch_scc1 {L}_ok\ns_mov_b32 s63, 0x40000\n{L}_chk:\nv_readfirstlane_b32 s55, v34\ns_nop 1\ns_cmp_ge_u32 s55, {tgt}\ns_cbranch_scc1 {L}_ok")
    A(f"s_sub_u32 s63, s63, 1\ns_cbranch_scc1 {L}_ok\nbuffer_load_dword v34, off, {sr(sd)}, {off} sc1\ns_waitcnt vmcnt(0)\ns_branch {L}_chk\n{L}_ok:")
def a_stream(A, kind):
    A("s_lshl_b32 s45, s43, 7\ns_lshl_b32 s46, s49, 5\ns_add_u32 s45, s45, s46\ns_mul_i32 s51, s45, 1280\ns_mov_b32 s52, s47")
    A("v_lshrrev_b32 v2, 3, v1\nv_mul_u32_u24 v2, 1280, v2\nv_lshrrev_b32 v3, 4, v1\nv_and_b32 v4, 7, v1\nv_xor_b32 v3, v3, v4\nv_lshl_add_u32 v10, v3, 4, v2")
    A("s_lshl_b32 s60, s49, 12\ns_mul_i32 s61, s49, 5120\ns_add_u32 s61, s61, 16384\ns_mul_i32 s46, s49, 320")
    A("s_mov_b32 s58, 0\ns_mov_b32 s59, 0\ns_mov_b32 s53, s60\ns_mov_b32 s57, s61")
    def prep(i):
        if i == 0: A("s_waitcnt lgkmcnt(0)"); srd(A, 16, 4, SZ_X); stamp(A, 1)
        if i == 1: A(f"v_xor_b32 v11, 64, v10\nv_add_u32 v11, {8*1280}, v11")
        if i in (2, 3): A(f"v_add_u32 v{10+i}, {16*1280}, v{8+i}")
        if i == 4:
            srd(A, 20, 6, SZ_WQKV)
            A(f"s_movk_i32 s62, {1280 if kind == 'kv' else 3520}\ns_movk_i32 s63, 1120\nv_add_u32 v5, s46, v1")
        if i >= 4:
            if i > 4: A("v_add_u32 v5, 64, v5")
            if kind == "kv":
                A(f"v_mul_u32_u24 v6, 6554, v5\nv_lshlrev_b32 v7, 4, v5\nv_lshrrev_b32 v8, 16, v6\nv_lshrrev_b32 v6, 17, v6\nv_mad_u32_u24 v7, v8, s63, v7\nv_mad_u32_u24 v{10+i}, v6, s62, v7")
            else:
                A(f"v_mul_u32_u24 v6, 3277, v5\nv_lshlrev_b32 v7, 4, v5\nv_lshrrev_b32 v6, 16, v6\nv_mad_u32_u24 v{10+i}, v6, s62, v7")
    items = [(10+m, 16, 51, 53, m*1024, "") for m in range(4)] + [(14+m, 20, 52, 57, m*1024, "") for m in range(5)]
    if STAMP and opt('now', 0): items = items[:4] + [(10+m%4, 16, 51, 57, m*1024, "") for m in range(5)]
    return Stream(A, items, lambda: A(f"s_add_u32 s51, s51, 128\ns_add_u32 s52, s52, {64*3840}"), prep)
def g_stream(A, job):
    tp, kp, ks = (3456, 64, 81920) if job == "B" else (4096, 4736, 128)
    def setup():
        if job == "B":
            srd(A, 16, 84, SZ_W1); srd(A, 20, 14, SZ_X, WS_HT)
            A(f"s_lshl_b32 s47, s96, 7\ns_mul_i32 s48, s97, {80*64}")
        else:
            srd(A, 16, 88, SZ_W2); srd(A, 20, 14, SZ_UW, WS_UW); srd(A, 36, 14, SZ_X, WS_OT)
            A(f"s_lshl_b32 s47, s40, 2\ns_and_b32 s45, s41, 3\ns_add_u32 s47, s47, s45\ns_lshl_b32 s47, s47, 7\ns_lshr_b32 s48, s41, 2\ns_mul_i32 s48, s48, {80*4736}")
        A(f"s_and_b32 s45, s49, 1\ns_lshr_b32 s56, s49, 1\ns_mul_i32 s46, s45, {32*tp}\ns_add_u32 s47, s47, s46\ns_mul_i32 s46, s45, {40*kp}\ns_add_u32 s48, s48, s46")
        A(f"s_mul_i32 s60, s56, {SUB}\ns_mul_i32 s46, s45, 5120\ns_add_u32 s61, s60, s46\ns_add_u32 s61, s61, 8192\ns_lshl_b32 s46, s45, 12\ns_add_u32 s60, s60, s46\ns_lshl_b32 s45, s45, 2")
        A(f"s_mul_i32 s51, s56, {64*tp}\ns_mul_i32 s52, s56, {ks}\ns_mov_b32 s58, 0\ns_add_u32 s53, s59, s60\ns_add_u32 s57, s59, s61")
        A("v_lshrrev_b32 v2, 3, v1\nv_and_b32 v4, 7, v1\nv_bfe_u32 v3, v1, 4, 1\nv_lshlrev_b32 v3, 1, v3")
        A(f"v_mul_u32_u24 v5, {tp}, v2\nv_add_u32 v5, s47, v5\nv_xor_b32 v6, v3, v4\nv_lshl_add_u32 v10, v6, 4, v5\nv_xor_b32 v6, 4, v6\nv_lshl_add_u32 v11, v6, 4, v5\nv_add_u32 v11, {8*tp}, v11")
        A(f"v_add_u32 v12, {16*tp}, v10\nv_add_u32 v13, {16*tp}, v11")
        A(f"v_lshrrev_b32 v3, 4, v1\nv_xor_b32 v3, v3, v4\nv_xor_b32 v3, s45, v3\nv_mul_u32_u24 v7, {kp}, v2\nv_add_u32 v7, s48, v7\nv_lshl_add_u32 v14, v3, 4, v7\nv_xor_b32 v3, 4, v3\nv_lshl_add_u32 v15, v3, 4, v7\nv_add_u32 v15, {8*kp}, v15")
        if job == "B": A(f"v_lshrrev_b32 v3, 2, v3\nv_mul_u32_u24 v8, {40960-64}, v3\nv_add_u32 v15, v15, v8\nv_xor_b32 v3, 1, v3\nv_mul_u32_u24 v8, {40960-64}, v3\nv_add_u32 v14, v14, v8")
        for m in range(2, 5): A(f"v_add_u32 v{14+m}, {16*kp}, v{12+m}")
    def adv():
        A(f"s_add_u32 s51, s51, {128*tp}\ns_add_u32 s52, s52, {2*ks}\ns_add_u32 s56, s56, 2")
        if job == "C":
            A(f"s_sub_u32 s45, s56, 27\ns_mul_i32 s46, s45, {64*tp}\ns_cmp_lt_u32 s45, 2\ns_cselect_b32 s16, s36, s16\ns_cselect_b32 s17, s37, s17\ns_cselect_b32 s18, s38, s18\ns_cselect_b32 s51, s46, s51")
            A(f"s_cmp_ge_u32 s56, 37\ns_cselect_b32 s52, {OOB}, s52")
    items = []
    for m in range(5):
        if m < 4: items.append((10+m, 16, 51, 53, m*1024, "sc1 " if job == "C" else ""))
        items.append((14+m, 20, 52, 57, m*1024, "sc1 "))
    st = Stream(A, items, adv, None); st.setup = setup
    return st
def pf_w1(A):
    srd(A, 24, 84, SZ_W1)
    A(f"s_and_b32 s45, s41, 3\ns_lshl_b32 s45, s45, 9\ns_sub_u32 s45, s45, 256\nv_add_u32 v2, s45, v0\nv_mul_u32_u24 v2, 3456, v2\ns_lshl_b32 s45, s96, 7\nv_add_u32 v2, s45, v2\ns_mov_b32 s45, {256*3456}")
    A("buffer_load_dword v240, v2, s[24:27], 0 offen\nbuffer_load_dword v241, v2, s[24:27], s45 offen")
    return 2
def pf_w2(A, thr=256+216):
    srd(A, 24, 88, SZ_W2)
    A("s_lshr_b32 s45, s41, 2\ns_mul_i32 s45, s45, 216\ns_sub_u32 s45, s45, 256\nv_add_u32 v2, s45, v0\nv_lshlrev_b32 v2, 12, v2\ns_lshl_b32 s45, s40, 2\ns_and_b32 s46, s41, 3\ns_add_u32 s45, s45, s46\ns_lshl_b32 s45, s45, 7\nv_add_u32 v2, s45, v2")
    A(f"v_mov_b32 v4, {OOB}\nv_cmp_gt_u32 vcc, {thr}, v0\nv_cndmask_b32 v2, v4, v2, vcc\nbuffer_load_dword v242, v2, s[24:27], 0 offen")
    return 1
def pf_w2r(A, nr):
    srd(A, 24, 88, SZ_W2)
    A("s_sub_u32 s45, s35, 256\nv_add_u32 v2, s45, v0\nv_lshlrev_b32 v2, 12, v2\ns_lshl_b32 s45, s40, 2\ns_and_b32 s46, s41, 3\ns_add_u32 s45, s45, s46\ns_lshl_b32 s45, s45, 7")
    for j in range((nr+255)//256):
        if nr < 256*j+256: A(f"v_mov_b32 v4, {OOB}\nv_cmp_gt_u32 vcc, {256+nr-256*j}, v0\nv_cndmask_b32 v2, v4, v2, vcc")
        A(f"buffer_load_dword v{242+j}, v2, s[24:27], s45 offen\ns_add_u32 s45, s45, {256*4096}")
def masks(A):
    srd(A, 8, 14, 256*ZS, WS_Z); srd(A, 24, 94, 256)
    A(f"s_and_b32 s28, s40, 1\ns_lshl_b32 s28, s28, 7\ns_mul_i32 s29, s40, {ZS}\ns_lshr_b32 s30, s41, 2\ns_mul_i32 s30, s30, {8*ZS}\ns_add_u32 s30, s30, s29\ns_add_u32 s30, s30, {40*ZS}\ns_add_u32 s31, s30, {64*ZS}\ns_add_u32 s32, s30, {128*ZS}\ns_add_u32 s33, s29, {232*ZS}")
def stat_ld(A):
    srd(A, 24, 14, 16384, WS_HT+SZ_X)
    A(f"s_lshl_b32 s45, s49, 8\ns_add_u32 m0, s45, {P0_X+3072}\ns_lshl_b32 s46, s43, 10\ns_add_u32 s45, s45, s46\nv_lshlrev_b32 v9, 2, v1\nbuffer_load_dword v9, s[24:27], s45 offen sc1 lds")
def wo_ld(A):
    srd(A, 24, 12, SZ_WO)
    A("s_mul_i32 s45, s96, 102400\ns_mul_i32 s46, s97, 160\ns_add_u32 s45, s45, s46\ns_lshl_b32 s46, s49, 10")
    for i in range(4):
        A(f"v_add_u32 v5, {256*i-256}, v0\nv_mul_u32_u24 v6, 6554, v5\nv_lshrrev_b32 v6, 16, v6\nv_mul_u32_u24 v6, 1120, v6\nv_lshl_add_u32 v6, v5, 4, v6")
        if i == 3: A(f"v_mov_b32 v7, {OOB}\nv_cmp_gt_u32 vcc, 800, v5\nv_cndmask_b32 v6, v7, v6, vcc")
        A(f"s_add_u32 m0, s46, {XB+20480+4096*i}\nbuffer_load_dwordx4 v6, s[24:27], s45 offen lds")
def loaders(A):
    B = g_stream(A, "B"); C = g_stream(A, "C")
    W = "s_waitcnt vmcnt(9)"; WB = W + "\ns_barrier"
    for kind in ("kv", "q"):
        L = f"l{kind}"
        A(f"{L}:"); S = a_stream(A, kind)
        S.issue(True); S.issue(); A("v_and_b32 v6, 255, v0"); npo = bulk(A, 6); masks(A)
        A(f"s_waitcnt vmcnt({9+npo})\ns_barrier\n{L}_ld:"); S.issue(); A(f"{WB}\ns_cmp_lt_u32 s58, 8\ns_cbranch_scc1 {L}_ld")
        poll_issue(A, L+"i", "s28", 24); S.issue(); A(W); poll_check(A, L+"i", "s28", 1, 24); A("s_barrier")
        poll_issue(A, L+"h", "s29"); S.issue(); A(W); stamp(A, 2)
        if kind == "kv": A("s_mov_b32 s99, 1\ns_cmp_lg_u32 s98, 0\ns_cbranch_scc1 l_nob\ns_branch l_be")
        else: A("s_mov_b32 s99, 0")
    A("l_be:"); poll_check(A, "l_be", "s29", 64); A("s_barrier"); stat_ld(A)
    if opt('ep', 0):
        n = pf_w1(A); B.setup(); B.issue(); A(f"s_waitcnt vmcnt({9+n})\ns_barrier"); B.issue(); A("s_barrier\ns_barrier"); B.issue(); n = 0
    else:
        B.setup(); B.issue(); A(WB); B.issue(); A("s_barrier\ns_barrier"); B.issue()
        QP = opt('qp', 2)
        if QP:
            A("s_cmp_lg_u32 s99, 0\ns_cbranch_scc1 l_bk\ns_barrier")
            if QP == 2: n = pf_w1(A); A(f"s_barrier\ns_waitcnt vmcnt({18+n})\ns_barrier\ns_waitcnt vmcnt({9+n})\ns_barrier")
            else: A(f"s_barrier\ns_waitcnt vmcnt(18)\ns_barrier\n{WB}"); n = pf_w1(A)
            B.issue(); A(f"s_waitcnt vmcnt({9+n})\ns_barrier\ns_branch l_bl\nl_bk:")
        n = pf_w1(A)
    A(f"s_cmp_eq_u32 s99, 0\ns_cbranch_scc1 l_be2\ns_barrier\nl_be2:\ns_barrier\ns_barrier\ns_waitcnt vmcnt({18+n})\ns_barrier\ns_waitcnt vmcnt({9+n})\ns_barrier")
    A("l_bl:"); B.issue(); A(f"{WB}\ns_cmp_lt_u32 s58, 15\ns_cbranch_scc1 l_bl")
    DC = opt('dc', 2); CP = opt('cp', 3)
    if not DC: poll_issue(A, "l_bp", "s30")
    B.issue(); A(W); stamp(A, 3)
    A("s_cmp_eq_u32 s98, 3\ns_cbranch_scc1 l_bx")
    if DC == 2:
        A("s_barrier"); C.setup(); A("s_waitcnt vmcnt(0)\ns_barrier"); poll_issue(A, "l_bp", "s30"); A("s_barrier\ns_waitcnt vmcnt(0)")
        poll_check(A, "l_ce", "s30", 8); A("s_barrier"); C.issue(); C.issue(); C.issue(); n = int(CP < 3); assert CP
    elif DC == 1:
        A("s_barrier"); poll_issue(A, "l_bp", "s30"); C.setup(); A("s_waitcnt vmcnt(0)\ns_barrier")
        poll_check(A, "l_ce", "s30", 8); A("s_barrier"); C.issue(); C.issue(); A("s_barrier"); C.issue(); n = int(CP < 3); assert CP
    elif opt('ep2', 0):
        poll_check(A, "l_ce", "s30", 8); A("s_barrier"); n = pf_w2(A); C.setup()
        C.issue(); A(f"s_waitcnt vmcnt({9+n})\ns_barrier"); C.issue(); A("s_barrier\ns_barrier"); C.issue(); n = 0
    else:
        poll_check(A, "l_ce", "s30", 8); A("s_barrier"); C.setup()
        C.issue(); A(WB); C.issue(); A("s_barrier\ns_barrier"); C.issue(); n = int(CP < 3)
        if not CP: pf_w2(A)
    A("s_barrier\nl_ce3:\ns_barrier")
    if CP in (1, 2): A(f"s_cmp_eq_u32 s98, 1\ns_cselect_b32 s35, {0 if CP == 2 else 472}, 472"); pf_w2(A, "s35")
    A(f"s_barrier\ns_waitcnt vmcnt({18+n})\ns_barrier\ns_waitcnt vmcnt({9+n})\ns_barrier")
    A("l_c0:\ns_mov_b32 s99, 0x0c0703\ns_mov_b32 s34, 0x202c08")
    A("l_cl:\ns_and_b32 s62, s99, 255\ns_cmp_lg_u32 s58, s62\ns_cbranch_scc1 l_c1"); poll_issue(A, "l_cq", "s31"); A("l_c1:"); C.issue(); A(W)
    A("s_add_u32 s62, s62, 1\ns_cmp_lg_u32 s58, s62\ns_cbranch_scc1 l_c2\ns_and_b32 s35, s34, 255"); poll_check(A, "l_cp", "s31", "s35")
    if STAMP and opt('cst', 0): A("s_mov_b64 s[64:65], s[66:67]\ns_mov_b64 s[66:67], s[68:69]\ns_mov_b64 s[68:69], s[70:71]\ns_memrealtime s[70:71]\ns_waitcnt lgkmcnt(0)")
    A("s_mov_b32 s31, s32\ns_mov_b32 s32, s33\ns_lshr_b32 s99, s99, 8\ns_lshr_b32 s34, s34, 8\nl_c2:\ns_barrier\ns_cmp_lt_u32 s58, 19\ns_cbranch_scc1 l_cl")
    stamp(A, 4)
    A("s_waitcnt vmcnt(0)\ns_barrier\ns_barrier"); stamp_out(A, 0); A("s_endpgm")
    A("l_nob:"); poll_check(A, "l_nb", "s29", 64); A("s_barrier"); stat_ld(A); A("s_waitcnt vmcnt(0)\ns_barrier")
    A("s_barrier\ns_barrier\ns_barrier\ns_cmp_lg_u32 s98, 1\ns_cbranch_scc1 l_clate")
    A(f"v_mov_b32 v34, 0\nv_mov_b32 v35, 163824\nds_write_b32 v35, v34\ns_mov_b32 s59, {2*CSLOT}"); C.setup()
    A("s_waitcnt lgkmcnt(0)\ns_barrier")
    if CP == 2: pf_w2(A)
    R0 = opt('r0', 512); RA = (1728-R0)//2
    if CP == 3: A("s_mov_b32 s35, 0"); pf_w2r(A, R0)
    A("s_barrier\ns_barrier"); poll_check(A, "l_op", "s30", 8)
    A("s_cmp_lg_u32 s49, 0\ns_cbranch_scc1 l_ow\nv_mov_b32 v34, 1\nds_write_b32 v35, v34\nl_ow:\nds_read_b32 v34, v35\ns_waitcnt lgkmcnt(0)\nv_readfirstlane_b32 s55, v34\ns_nop 1\ns_cmp_eq_u32 s55, 0\ns_cbranch_scc1 l_ow")
    C.issue(); C.issue(); C.issue(); n and not CP and pf_w2(A); A("s_branch l_ce3")
    A("l_bx:\ns_barrier\ns_waitcnt vmcnt(0)\ns_barrier\ns_barrier\ns_barrier\ns_barrier")
    A(f"l_clate:\ns_mov_b32 s59, {2*CSLOT}"); C.setup(); A("v_mov_b32 v34, 0\ns_barrier")
    if CP == 3: A(f"s_cmp_lg_u32 s98, 3\ns_cbranch_scc1 l_np2\ns_cmp_ge_u32 s41, 28\ns_cselect_b32 s35, {RA}, 0\ns_add_u32 s35, s35, {R0}"); pf_w2r(A, RA); A("l_np2:")
    else: pf_w2(A)
    poll_check(A, "l_cx", "s30", 8); A("s_barrier")
    C.issue(); C.issue(); A(f"{WB}\ns_branch l_c0")
    A("laux:"); masks(A); A("v_mov_b32 v34, 0"); poll_check(A, "l_ai", "s28", 1, 24); A("s_waitcnt vmcnt(0)\ns_barrier")
    srd(A, 20, 6, SZ_WQKV); A("v_and_b32 v6, 255, v0"); bulk(A, 6)
    A(f"s_mov_b32 s59, {CSLOT}"); B.setup(); LAT & 2 and pf_w1(A); LAT & 1 and wo_ld(A); A("v_mov_b32 v34, 0\ns_barrier"); poll_check(A, "l_ax", "s29", 64); A("s_barrier"); stamp(A, 2)
    B.issue(); B.issue(); n = pf_w2(A) if opt('e2', 0) else 0; A(f"s_waitcnt vmcnt({9+n})\ns_barrier\ns_branch l_bl")

def atom(A, L, o, m):
    if L: A(f"s_cmp_lg_u32 s42, 0\ns_cbranch_scc1 {L}_np")
    srd(A, 8, 14, 256*ZS, WS_Z)
    A(f"v_mul_u32_u24 v2, {ZS}, v1\nv_mov_b32 v3, 1\ns_mov_b32 exec_lo, s{m}\ns_mov_b32 exec_hi, 0\nbuffer_atomic_add v3, v2, s[8:11], s{o} offen sc1\ns_mov_b64 exec, -1")
def publish(A, L):
    A(f"s_cmp_eq_u32 s57, 0\ns_cbranch_scc1 {L}_p0\ns_waitcnt vmcnt(0)\n{L}_p0:\ns_barrier\ns_cbranch_scc1 {L}_np")
    atom(A, L, 56, 57); A(f"{L}_np:")

def main(A):
    k = KN
    A(f".globl {k}\n.p2align 8\n.type {k},@function\n{k}:\ns_cmp_ge_u32 s2, 256\ns_cbranch_scc1 k_end")
    for i in range(6): stamp(A, i)
    A("s_load_dwordx4 s[4:7], s[0:1], 0\ns_load_dwordx2 s[12:13], s[0:1], 16\ns_load_dwordx8 s[84:91], s[0:1], 32\ns_load_dwordx4 s[92:95], s[0:1], 64\ns_load_dwordx2 s[14:15], s[0:1], 80")
    A("v_and_b32 v1, 63, v0\nv_lshrrev_b32 v2, 6, v0\ns_and_b32 s40, s2, 7\ns_lshr_b32 s41, s2, 3\nv_readfirstlane_b32 s42, v2")
    A("s_lshr_b32 s46, s40, 1\ns_lshl_b32 s43, s46, 2\ns_and_b32 s45, s41, 3\ns_add_u32 s43, s43, s45")
    A("s_and_b32 s44, s40, 1\ns_lshl_b32 s97, s44, 2\ns_add_u32 s97, s97, s45\ns_lshr_b32 s45, s41, 2\ns_sub_u32 s49, s42, 4\ns_mov_b32 s98, 0")
    A("s_cmp_ge_u32 s41, 24\ns_cbranch_scc1 r_aux\ns_cmp_ge_u32 s41, 16\ns_cbranch_scc1 r_q")
    A("s_lshl_b32 s44, s44, 2\ns_add_u32 s44, s44, s45\ns_mul_i32 s47, s44, 160\ns_add_u32 s47, s47, 1280")
    A("s_mul_i32 s96, s46, 3\ns_add_u32 s96, s96, s45\ns_add_u32 s96, s96, 16\ns_cmp_ge_u32 s96, 27\ns_cselect_b32 s98, 2, 0\ns_cmp_eq_u32 s45, 3\ns_cselect_b32 s98, 1, s98")
    A("s_cmp_lt_u32 s42, 4\ns_cbranch_scc1 ckv")
    loaders(A)
    A("r_q:\ns_lshl_b32 s96, s46, 1\ns_add_u32 s96, s96, s45\ns_add_u32 s96, s96, 4\ns_lshl_b32 s44, s44, 1\ns_add_u32 s44, s44, s45\ns_sub_u32 s44, s44, 4\ns_mul_i32 s47, s44, 320")
    A("s_cmp_ge_u32 s42, 4\ns_cbranch_scc1 lq")
    A(f"s_mul_i32 s56, s44, {8*ZS}\ns_add_u32 s56, s56, {8*ZS}\ns_mov_b32 s57, 255\ns_mov_b32 s58, {104*ZS}")
    a_cons(A, "q"); A("s_branch cB")
    A("r_aux:\ns_lshl_b32 s96, s46, 1\ns_add_u32 s96, s96, s45\ns_sub_u32 s96, s96, 6\ns_mov_b32 s98, 3")
    A("s_sub_u32 s44, s41, 24\ns_lshl_b32 s43, s40, 3\ns_add_u32 s43, s43, s44")
    aux_job(A)
    A(f"s_cmp_ge_u32 s42, 4\ns_cbranch_scc1 laux\ns_mov_b32 s56, 0\ns_mov_b32 s57, 255\ns_mov_b32 s58, {40*ZS}")
    stamp(A, 4); publish(A, "ax"); stamp_out(A, 0); A("s_mov_b32 s57, 0\ns_branch cB")
    A("cO:"); stamp(A, 0); publish(A, "cO")
    A("s_lshl_b32 s45, s40, 2\ns_add_u32 s45, s45, s41\ns_sub_u32 s45, s45, 12\ns_and_b32 s43, s45, 7\ns_lshr_b32 s44, s45, 3")
    srd(A, 16, 14, SZ_KVP, WS_KVP); srd(A, 20, 14, SZ_X, WS_PQ); srd(A, 24, 14, SZ_X, WS_OT)
    A(f"s_lshl_b32 s60, s43, 2\ns_add_u32 s60, s60, s44\ns_mul_i32 s60, s60, {ZS}\ns_add_u32 s60, s60, {8*ZS}\ns_mul_i32 s58, s44, {2*ZS}\ns_add_u32 s58, s58, {232*ZS}\ns_mov_b32 s59, 3\ns_mov_b32 s57, 0\nv_mov_b32 v34, 0")
    srd(A, 8, 14, 256*ZS, WS_Z)
    poll_check(A, "cO", "s60", 32, 8, "s42"); A("s_barrier")
    o_cons(A); A("s_branch cC")
    A(f"ckv:\ns_mul_i32 s56, s44, {4*ZS}\ns_add_u32 s56, s56, {8*ZS}\ns_mov_b32 s57, 15\ns_mov_b32 s58, {168*ZS}\ns_mov_b32 s59, 0")
    A("s_or_b32 s45, s2, s42\ns_cmp_lg_u32 s45, 0\ns_cbranch_scc1 ckv2\ns_waitcnt lgkmcnt(0)")
    srd(A, 8, 14, 256*ZS, WS_Z); srd(A, 24, 94, 256)
    A(f"v_mul_u32_u24 v2, {ZS}, v1\nv_mov_b32 v3, 0\nbuffer_store_dword v3, v2, s[8:11], 0 offen sc1\ns_mov_b32 s45, {64*ZS}\nbuffer_store_dword v3, v2, s[8:11], s45 offen sc1\ns_mov_b32 s45, {128*ZS}\nbuffer_store_dword v3, v2, s[8:11], s45 offen sc1\ns_mov_b32 s45, {192*ZS}\nbuffer_store_dword v3, v2, s[8:11], s45 offen sc1\nv_lshlrev_b32 v2, 7, v1\nv_mov_b32 v4, 1\ns_waitcnt vmcnt(0)\nbuffer_store_dword v4, v2, s[24:27], 0 offen sc1\nckv2:")
    a_cons(A, "kv")
    A("s_cmp_eq_u32 s98, 1\ns_cbranch_scc1 cO\ns_cmp_eq_u32 s98, 2\ns_cbranch_scc1 cC")
    A("cB:")
    def midB():
        A("s_cmp_lg_u32 s98, 3\ns_cbranch_scc1 cB_nw"); aux_wo(A); A("cB_nw:")
        srd(A, 24, 14, SZ_UW, WS_UW); srd(A, 28, 86, 1728*2)
        A("s_and_b32 s45, s42, 1\ns_lshl_b32 s45, s45, 6\ns_lshr_b32 s46, s42, 1\ns_lshl_b32 s46, s46, 5\ns_add_u32 s45, s45, s46\ns_lshl_b32 s47, s96, 7\ns_add_u32 s45, s45, s47\nv_lshrrev_b32 v2, 4, v1\nv_lshlrev_b32 v2, 3, v2\nv_add_u32 v2, s45, v2")
        A("buffer_load_dwordx2 v[18:19], v2, s[28:31], 0 offen")
        A(f"v_subrev_u32 v2, s47, v2\nv_and_b32 v3, 15, v1\nv_mul_u32_u24 v3, 144, v3\nv_add_u32 v3, {XB+36864}, v3\nv_add_u32 v16, v2, v3")
        A(f"v_lshrrev_b32 v2, 3, v0\nv_and_b32 v3, 7, v0\nv_mul_u32_u24 v14, 144, v2\nv_lshl_add_u32 v14, v3, 4, v14\nv_add_u32 v14, {XB+36864}, v14")
        A(f"s_mul_i32 s45, s97, 80\nv_add_u32 v2, s45, v2\nv_mul_u32_u24 v2, 4736, v2\nv_lshl_add_u32 v2, v3, 4, v2\nv_add_u32 v15, s47, v2\nv_mov_b32 v3, {OOB}\nv_cmp_gt_u32 vcc, 128, v0\nv_cndmask_b32 v17, v3, v15, vcc")
    core_cons(A, "cB", 32, True, 1, None, midB)
    c0 = -2*0.7978845608028654*LOG2E
    A(f"s_mul_i32 s45, s97, {8*ZS}\ns_add_u32 s56, s45, s58\ns_cmp_eq_u32 s58, {168*ZS}\ns_cselect_b32 s57, 0, 255\ns_cselect_b32 s59, 255, 0\ns_add_u32 s58, s45, {168*ZS}")
    A(f"s_mov_b32 s62, {f2u(c0*0.044715)}\nv_mov_b32 v9, {f2u(c0)}\ns_mov_b32 s46, 0")
    for h in range(2): A(f"v_lshlrev_b32 v{32+2*h}, 16, v{18+h}\nv_and_b32 v{33+2*h}, 0xffff0000, v{18+h}")
    for r in range(20): A(f"v_add_f32 v{96+r}, v{96+r}, v{32+(r&3)}")
    for r in range(20): A(f"v_mul_f32 v{48+r}, v{96+r}, v{96+r}")
    for r in range(20): A(f"v_fma_f32 v{48+r}, v{48+r}, s62, v9")
    for r in range(20): A(f"v_mul_f32 v{48+r}, v{48+r}, v{96+r}")
    for r in range(20): A(f"v_exp_f32 v{48+r}, v{48+r}")
    for r in range(20): A(f"v_add_f32 v{48+r}, 1.0, v{48+r}")
    for rt in range(5):
        for r in range(4*rt, 4*rt+4): A(f"v_rcp_f32 v{48+r}, v{48+r}")
        for r in range(4*rt, 4*rt+4): A(f"v_mul_f32 v{96+r}, v{96+r}, v{48+r}")
        A(f"v_cvt_pk_bf16_f32 v{70+2*rt}, v{96+4*rt}, v{97+4*rt}\nv_cvt_pk_bf16_f32 v{71+2*rt}, v{98+4*rt}, v{99+4*rt}")
        A(f"ds_write_b64 v16, {vr(70+2*rt,2)} offset:{16*144*rt}")
    A("s_waitcnt lgkmcnt(0)\ns_barrier")
    for i in range(3): A(f"ds_read_b128 {vr(48+4*i,4)}, v14 offset:{32*144*i}")
    for i in range(3): A(f"s_waitcnt lgkmcnt({2-i})\nbuffer_store_dwordx4 {vr(48+4*i,4)}, v{17 if i == 2 else 15}, s[24:27], s46 offen sc1\ns_add_u32 s46, s46, {32*4736}")
    stamp_out(A, 1)
    A("cC:")
    def midC():
        srd(A, 24, 92, SZ_X); srd(A, 28, 4, SZ_X); srd(A, 32, 90, 4096)
        A("s_lshl_b32 s45, s40, 2\ns_and_b32 s46, s41, 3\ns_add_u32 s45, s45, s46\ns_lshl_b32 s45, s45, 6\ns_and_b32 s46, s42, 1\ns_lshl_b32 s46, s46, 5\ns_add_u32 s45, s45, s46\ns_lshr_b32 s46, s42, 1\ns_lshl_b32 s46, s46, 4\ns_add_u32 s45, s45, s46\nv_and_b32 v2, 15, v1\nv_add_u32 v2, s45, v2\nv_lshlrev_b32 v3, 1, v2")
        A("v_mul_u32_u24 v16, 1280, v2\nv_lshrrev_b32 v4, 4, v1\nv_lshl_add_u32 v16, v4, 3, v16\ns_lshr_b32 s45, s41, 2\ns_mul_i32 s45, s45, 160\nv_add_u32 v16, s45, v16")
        for rt in range(5): A(f"buffer_load_dwordx2 {vr(82+2*rt,2)}, v16, s[28:31], 0 offen offset:{32*rt}")
        A("buffer_load_ushort v92, v3, s[32:35], 0 offen")
    def pubC():
        A(f"s_cmp_lg_u32 s59, 0\ns_cselect_b32 s60, {opt('defat', 1)}, 0")
    core_cons(A, "cC", 37, False, 2, pubC, midC)
    A("v_lshlrev_b32 v92, 16, v92")
    for rt in range(5):
        a = 96+4*rt; x = 82+2*rt; t = 32+4*rt
        for h in range(2): A(f"v_lshlrev_b32 v{t+2*h}, 16, v{x+h}\nv_and_b32 v{t+2*h+1}, 0xffff0000, v{x+h}")
        for r in range(4): A(f"v_add_f32 v{a+r}, v{a+r}, v92")
        for r in range(4): A(f"v_add_f32 v{a+r}, v{a+r}, v{t+r}")
        A(f"v_cvt_pk_bf16_f32 v{x}, v{a}, v{a+1}\nv_cvt_pk_bf16_f32 v{x+1}, v{a+2}, v{a+3}")
        A(f"buffer_store_dwordx2 {vr(x,2)}, v16, s[24:27], 0 offen offset:{32*rt}")
    stamp_out(A, 2)
    A("k_end:\ns_endpgm\ncC_def:\ns_waitcnt vmcnt(0)"); atom(A, None, 58, 59); A("s_branch cCd_np")

KN = "m_kernel"
def build():
    assert all((c*3277)>>16 == c//20 for c in range(1280)) and all((c*6554)>>16 == c//10 for c in range(1280)) and all((c*52)>>8 == c//5 for c in range(25)) and all((c*4370)>>16 == c//15 for c in range(256))
    A = Asm(); main(A)
    hdr = "; generated by gen2.py (hand-written generator): one launch, per-workgroup job chain (qkv|LN) -> (token GEMM1|attn normalise) -> GEMM2+out-proj\n"
    hdr += f"; @launch kernel={KN} grid=(256,1,1) block=(512,1,1) lds=163840\n"
    hdr += '.amdgcn_target "amdgcn-amd-amdhsa--gfx950"\n.text\n'
    return hdr + A.finish() + f""".section .rodata,"a"
.p2align 6
.amdhsa_kernel {KN}
  .amdhsa_next_free_vgpr 256
  .amdhsa_next_free_sgpr 100
  .amdhsa_accum_offset 256
  .amdhsa_group_segment_fixed_size 0
  .amdhsa_kernarg_size 88
  .amdhsa_user_sgpr_count 2
  .amdhsa_user_sgpr_kernarg_segment_ptr 1
  .amdhsa_system_sgpr_workgroup_id_x 1
.end_amdhsa_kernel
"""
if __name__ == "__main__":
    STAMP = "stamp" in sys.argv
    out = sys.argv[1] if len(sys.argv) > 1 else f"cdna_kernels/{NAME}.s"
    open(out, "w").write(build())
```

```python
import sys
from asmlib import Asm
NAME = "parallel_sum__linear_attn_block__mixer_token_mlp__prompt"
WS_HT, WS_PQ, WS_UW, WS_OT, WS_KVP = 0xC00000, 0x280000, 0x500000, 0x800000, 0xB00000
SZ_X = 2048*640*2; SZ_WQKV = 640*1920*2; SZ_WO = 640*640*2; SZ_W1 = 2048*1728*2; SZ_W2 = SZ_W1
SZ_UW = 640*4736; SZ_KVP = 128*6720
OOB = 0x40000000
LOG2E = 1.4426950408889634
import struct, os
OPT = dict(kv.split('=') for kv in os.environ.get('GOPT','').split(',') if kv)
def opt(k, d): return int(OPT.get(k, d))
HTP = opt('htp', 4096); P2M = opt('p2m', 2); PF0 = opt('pf0', 1)
def f2u(x): return "0x%08x" % struct.unpack("<I", struct.pack("<f", x))[0]

def srd(A, d, p, size, off=0):
    if off:
        A(f"s_add_u32 s{d}, s{p}, {off}\ns_addc_u32 s{d+1}, s{p+1}, 0")
    else:
        A(f"s_mov_b32 s{d}, s{p}\ns_mov_b32 s{d+1}, s{p+1}")
    A(f"s_mov_b32 s{d+2}, {size}\ns_mov_b32 s{d+3}, 0x00020000")
def vr(b, n): return f"v[{b}:{b+n-1}]"
def sr(b, n=4): return f"s[{b}:{b+n-1}]"
XB = 110592; P0_X = XB + 28672; NS0 = 3; P0_SLOT = 36864; NSL = 3; SUB = 18432; CSLOT = 2*SUB
def bf16r(A, d, s):
    A(f"v_cvt_pk_bf16_f32 v{d}, v{s}, v{s}\nv_and_b32 v{d}, 0xffff0000, v{d}")
def halfsum(A, r, t):
    A(f"v_mov_b32 v{t}, v{r}\nv_permlane32_swap_b32 v{t}, v{r}\nv_add_f32 v{r}, v{t}, v{r}")
def ln_scalars(A, sx, sxx, mb, rs, t):
    A(f"v_mul_f32 v{sx}, {f2u(1/640)}, v{sx}\nv_mul_f32 v{sxx}, {f2u(1/640)}, v{sxx}")
    A(f"v_fma_f32 v{sxx}, -v{sx}, v{sx}, v{sxx}\nv_max_f32 v{sxx}, 0, v{sxx}")
    bf16r(A, mb, sx); bf16r(A, t, sxx)
    A(f"v_add_f32 v{t}, {f2u(1e-5)}, v{t}"); bf16r(A, t, t)
    A(f"v_sqrt_f32 v{t}, v{t}"); bf16r(A, t, t)
    A(f"v_rcp_f32 v{rs}, v{t}")


STAMP = False
WS_ST = 0x1000000
def stamp(A, idx):
    if STAMP: A(f"s_memrealtime s[{64+2*idx}:{65+2*idx}]")
def stamp_out(A, kid, n=6):
    if not STAMP: return
    A(f"s_memrealtime s[{64+2*(n-1)}:{65+2*(n-1)}]\ns_waitcnt lgkmcnt(0)")
    srd(A, 76, 14, 1<<20, WS_ST)
    A(f"s_add_u32 s45, s2, {kid*256}\ns_lshl_b32 s45, s45, 3\ns_add_u32 s45, s45, s42\ns_lshl_b32 s45, s45, 6\nv_mov_b32 v2, s45")
    A("s_mov_b64 exec, 1")
    for i in range(n): A(f"v_mov_b32 v3, s{64+2*i}\nbuffer_store_dword v3, v2, s[76:79], 0 offen offset:{4*i}")
    A("s_mov_b64 exec, -1")
def bulk(A, t):
    A(f"v_mul_u32_u24 v2, 4370, v{t}\nv_lshrrev_b32 v2, 16, v2\nv_mul_u32_u24 v3, 15, v2\nv_sub_u32 v3, v{t}, v3")
    A("v_mul_u32_u24 v4, 52, v3\nv_lshrrev_b32 v4, 8, v4\nv_mul_u32_u24 v4, 640, v4\nv_lshl_add_u32 v3, v3, 7, v4")
    A("s_mul_i32 s45, s41, 17\ns_add_u32 s46, s45, 128\nv_add_u32 v2, s46, v2\nv_mul_u32_u24 v2, 3840, v2\nv_add_u32 v2, v2, v3\ns_and_b32 s46, s40, 1\ns_mul_i32 s46, s46, 640\nv_add_u32 v2, s46, v2")
    A("buffer_load_dword v250, v2, s[20:23], 0 offen")
    return 1
def a_cons(A, kind):
    L = f"p0{kind}"
    A("s_lshl_b32 s60, s42, 12")
    A("v_and_b32 v2, 31, v1\nv_lshrrev_b32 v3, 5, v1\nv_lshrrev_b32 v4, 1, v2\nv_and_b32 v4, 7, v4")
    A("v_lshlrev_b32 v5, 7, v2\nv_add_u32 v5, s60, v5")
    A("v_bfe_u32 v6, v1, 2, 2\nv_lshl_add_u32 v6, v3, 3, v6\nv_mul_u32_u24 v6, 320, v6")
    A("v_bfe_u32 v7, v1, 4, 1\nv_lshlrev_b32 v7, 5, v7\nv_and_b32 v8, 3, v1\nv_lshl_add_u32 v7, v8, 3, v7\nv_add_u32 v6, v6, v7\nv_add_u32 v6, 16384, v6")
    for jj in range(4):
        A(f"s_add_u32 s45, s42, {jj}\ns_and_b32 s45, s45, 3\ns_lshl_b32 s46, s45, 1\ns_mul_i32 s45, s45, 5120")
        A(f"v_add_u32 v7, s46, v3\nv_xor_b32 v7, v7, v4\nv_lshl_add_u32 v{20+jj}, v7, 4, v5\nv_add_u32 v{24+jj}, s45, v6")
        A(f"v_mov_b32 v{28+jj}, v{20+jj}\nv_mov_b32 v{32+jj}, v{24+jj}")
    A("s_mov_b32 s55, 0x3f803f80\ns_mov_b32 s50, 0\ns_mov_b32 s54, 0")
    for r in list(range(96, 176)) + list(range(180, 200)): A(f"v_mov_b32 v{r}, 0")
    A("v_and_b32 v2, 15, v1\nv_bfe_u32 v3, v1, 4, 1\nv_cmp_eq_u32 vcc, v2, v3\nv_mov_b32 v4, s55")
    for r in range(4): A(f"v_cndmask_b32 v{44+r}, 0, v4, vcc")
    SET = [48, 72]
    def rlist(jj):
        b = SET[jj & 1]
        R = [f"ds_read_b128 {vr(b,4)}, v{28+jj}"]
        for n in range(5):
            for hh in range(2):
                R.append(f"ds_read_b64_tr_b16 {vr(b+4+4*n+2*hh,2)}, v{32+jj} offset:{hh*1280+n*64}")
        return R
    def reads(jj):
        for r in rlist(jj): A(r)
    A("s_waitcnt lgkmcnt(0)")
    srd(A, 24, 14, *( (SZ_KVP, WS_KVP) if kind == 'kv' else (SZ_X, WS_PQ)))
    stamp(A, 1)
    A("s_barrier")
    stamp(A, 2)
    reads(0)
    A(f"{L}_loop:")
    A(f"s_add_u32 s50, s50, 1\ns_add_u32 s54, s54, {P0_SLOT}\ns_cmp_ge_u32 s54, {NS0*P0_SLOT}\ns_cselect_b32 s54, 0, s54")
    for jj in range(4):
        b = SET[jj & 1]
        FINE = opt('fine', 1)
        P0R = ([4,4,3,0,0] if jj == 2 else [3,2,2,2,2]) if FINE else [3,3,3,2,0]
        if jj == 3 or not FINE: A("s_waitcnt lgkmcnt(0)")
        if jj == 3: A("s_barrier")
        R = rlist((jj+1) & 3)
        dots = ["", "", ""]

        j2 = {0: [0], 1: [1], 2: [2], 3: [3]}[jj]
        for j in j2: dots.append(f"v_add_u32 v{28+j}, s54, v{20+j}"); dots.append(f"v_add_u32 v{32+j}, s54, v{24+j}")
        per = (len(dots)+4)//5
        for n in range(5):
            acc = vr(96+16*n, 16)
            if FINE and jj < 3: A(f"s_waitcnt lgkmcnt({2*(4-n)+sum(P0R[:n])})")
            if STAMP and opt('nomf', 0) and n: pass
            elif kind == "kv": A(f"v_mfma_f32_32x32x16_bf16 {acc}, {vr(b,4)}, {vr(b+4+4*n,4)}, {acc}")
            else: A(f"v_mfma_f32_32x32x16_bf16 {acc}, {vr(b+4+4*n,4)}, {vr(b,4)}, {acc}")
            for _ in range(P0R[n]): A(R.pop(0))
            for d in dots[n*per:(n+1)*per]:
                if d: A(d)
            if jj == 0: A(f"v_mfma_f32_16x16x32_bf16 {vr(180+4*n,4)}, v[44:47], {vr(b+4+4*n,4)}, {vr(180+4*n,4)}")
    A(f"s_cmp_lt_u32 s50, 10\ns_cbranch_scc1 {L}_loop\ns_waitcnt lgkmcnt(0)\ns_nop 2")
    stamp(A, 3)
    A(f"v_lshlrev_b32 v2, 2, v1\ns_mul_i32 s45, s42, 768\nv_add_u32 v3, s45, v2\nv_add_u32 v3, {P0_X}, v3")
    A("s_mov_b64 exec, 0xffff")
    for n in range(5):
        src = 180+4*n
        A(f"ds_write2_b32 v3, v{src}, v{src+1} offset0:{32*n} offset1:{32*n+16}")
    A(f"s_mov_b64 exec, -1\nv_and_b32 v2, 31, v1\nv_lshlrev_b32 v2, 2, v2\nv_add_u32 v2, {P0_X}, v2\ns_lshl_b32 s45, s42, 8\nv_add_u32 v3, s45, v2\nds_read_b32 v37, v3 offset:3072\nds_read_b32 v39, v3 offset:3200")
    A("s_waitcnt vmcnt(0) lgkmcnt(0)\ns_barrier")
    for n in range(5):
        for w in range(4): A(f"ds_read_b32 v{48+4*n+w}, v2 offset:{w*768+n*128}")
    A("v_lshrrev_b32 v5, 16, v37\nv_or_b32 v72, v5, v37\nv_xor_b32 v72, 0x80008000, v72\nv_mov_b32 v73, 0\nv_mov_b32 v74, 0\nv_mov_b32 v75, 0")
    A("v_cmp_gt_u32 vcc, 32, v1")
    if kind == "kv":
        A(f"v_lshrrev_b32 v4, 5, v1\nv_lshlrev_b32 v4, 4, v4\nv_add_u32 v4, s45, v4\nv_add_u32 v4, {P0_X+3200}, v4")
        for q in range(4): A(f"ds_read_b128 {vr(176+4*q,4)}, v4 offset:{32*q}")
    A(f"s_waitcnt lgkmcnt({4 if kind == 'kv' else 0})")
    for n in range(5):
        b = 48+4*n
        A(f"v_add_f32 v{b}, v{b}, v{b+1}\nv_add_f32 v{b+2}, v{b+2}, v{b+3}\nv_add_f32 v{b}, v{b}, v{b+2}")
        bf16r(A, b+1, b)
        A(f"v_sub_f32 v{b+2}, v{b}, v{b+1}\nv_cvt_pk_bf16_f32 v{b}, v{b+1}, v{b+2}\nv_cndmask_b32 v{b}, 0, v{b}, vcc")
        A(f"v_mov_b32 v{b+1}, 0\nv_mov_b32 v{b+2}, 0\nv_mov_b32 v{b+3}, 0")
    for n in range(5):
        acc = vr(96+16*n, 16)
        if kind == "kv": A(f"v_mfma_f32_32x32x16_bf16 {acc}, v[72:75], {vr(48+4*n,4)}, {acc}")
        else: A(f"v_mfma_f32_32x32x16_bf16 {acc}, {vr(48+4*n,4)}, v[72:75], {acc}")
    A(f"s_mov_b32 s62, {f2u(1e-6)}\ns_mov_b32 s63, {f2u(LOG2E)}\nv_mov_b32 v9, s62")
    def phi(r, rsreg, t, keep=None):
        if keep is not None: A(f"v_mul_f32 v{keep}, v{r}, v{rsreg}")
        A(f"v_fma_f32 v{r}, v{r}, v{rsreg}, v9\nv_mul_f32 v{t}, s63, v{r}\nv_exp_f32 v{t}, v{t} clamp\nv_max_f32 v{r}, s62, v{r}\nv_add_f32 v{r}, v{r}, v{t}")
    if kind == "q":
        A("s_lshl_b32 s45, s44, 7\ns_lshl_b32 s46, s43, 2\ns_add_u32 s45, s45, s46\ns_add_u32 s45, s45, s42\ns_mul_i32 s45, s45, 5120\nv_lshlrev_b32 v2, 4, v1\nv_add_u32 v3, 4096, v2")
        A(f"s_add_u32 s46, s45, {64*5120}")
        for n in range(5):
            for qq in range(2):
                a = 96+16*n+8*qq; o = 176+8*n+4*qq
                for r in range(8): phi(a+r, 39, 4+(r&3))
                for r in range(4): A(f"v_cvt_pk_bf16_f32 v{o+r}, v{a+2*r}, v{a+2*r+1}")
                A(f"v_permlane32_swap_b32 v{o}, v{o+2}\nv_permlane32_swap_b32 v{o+1}, v{o+3}")
                jj = 2*n+qq; A(f"buffer_store_dwordx4 {vr(o,4)}, v{3 if jj%5 == 4 else 2}, s[24:27], s{45+jj//5} offen offset:{1024*(jj%5&3)} sc1")
        stamp_out(A, 0)
        return
    A("s_waitcnt lgkmcnt(0)")
    A("v_and_b32 v2, 31, v1\nv_cmp_gt_u32 vcc, 16, v2")
    for n in range(5):
        for r in range(16):
            a = 96+16*n+r
            if n < 2: phi(a, 176+r, 4+(r&3))
            elif n == 2:
                phi(a, 176+r, 4+(r&1), keep=6+(r&1)); A(f"v_cndmask_b32 v{a}, v{6+(r&1)}, v{a}, vcc")
            else: A(f"v_mul_f32 v{a}, v{a}, v{176+r}")
        for r in range(8): A(f"v_cvt_pk_bf16_f32 v{48+8*n+r}, v{96+16*n+2*r}, v{96+16*n+2*r+1}")
    for r in range(4): A(f"v_mov_b32 v{88+r}, s55")
    prods = [(0,2),(0,3),(1,3),(1,4),(2,4)]
    for pi,(dt,et) in enumerate(prods):
        acc = vr(96+16*pi,16)
        A(f"v_mfma_f32_32x32x16_bf16 {acc}, {vr(48+8*dt,4)}, {vr(48+8*et,4)}, 0")
        A(f"v_mfma_f32_32x32x16_bf16 {acc}, {vr(52+8*dt,4)}, {vr(52+8*et,4)}, {acc}")
    for dt in range(3):
        acc = vr(176+16*dt,16)
        A(f"v_mfma_f32_32x32x16_bf16 {acc}, {vr(48+8*dt,4)}, v[88:91], 0")
        A(f"v_mfma_f32_32x32x16_bf16 {acc}, {vr(52+8*dt,4)}, v[88:91], {acc}")
    A("s_mul_i32 s45, s42, 7168\ns_add_u32 s45, s45, "+str(XB)+"\nv_lshrrev_b32 v3, 5, v1\nv_lshlrev_b32 v3, 2, v3\nv_mov_b32 v8, s45\nv_add_u32 v8, 6912, v8")
    for et in (2,3,4):
        A(f"v_add_u32 v4, {32*et-80}, v2")
        A(f"v_mul_i32_i24 v{10+et}, 80, v4\nv_add_u32 v{10+et}, s45, v{10+et}")
        A(f"v_mul_i32_i24 v5, 3277, v4\nv_ashrrev_i32 v5, 16, v5\nv_mul_i32_i24 v5, 20, v5\nv_sub_u32 v{16+et}, v3, v5")
    for pi,(dt,et) in enumerate(prods):
        for q in range(4):
            t = 24+(q&1)*2
            A(f"v_add_u32 v{t}, {32*dt+8*q}, v{16+et}\nv_cmp_gt_u32 vcc, 20, v{t}\nv_lshl_add_u32 v{t+1}, v{t}, 2, v{10+et}\nv_cndmask_b32 v{t+1}, v8, v{t+1}, vcc")
            A(f"ds_write_b128 v{t+1}, {vr(96+16*pi+4*q,4)}")
    A("v_lshlrev_b32 v4, 2, v3\nv_add_u32 v4, s45, v4")
    A("s_mov_b32 exec_lo, 1\ns_mov_b32 exec_hi, 1")
    for dt in range(3):
        for q in range(4):
            if 32*dt+8*q < 80: A(f"ds_write_b128 v4, {vr(176+16*dt+4*q,4)} offset:{6400+(32*dt+8*q)*4}")
    A("s_mov_b64 exec, -1\ns_waitcnt lgkmcnt(0)\ns_barrier")
    A(f"v_lshlrev_b32 v2, 4, v0\nv_add_u32 v6, {XB}, v2")
    for h in range(2):
        for w in range(4): A(f"ds_read_b128 {vr(48+16*h+4*w,4)}, v6 offset:{w*7168+h*4096}")
    A("s_lshl_b32 s45, s43, 3\ns_add_u32 s45, s45, s44\ns_mul_i32 s45, s45, 6720\nv_add_u32 v3, s45, v2")
    A(f"v_add_u32 v4, 4096, v3\nv_mov_b32 v5, {OOB}\nv_cmp_gt_u32 vcc, 164, v0\nv_cndmask_b32 v4, v5, v4, vcc")
    A("s_waitcnt lgkmcnt(0)")
    for h in range(2):
        b = 48+16*h
        for r in range(4): A(f"v_add_f32 v{b+r}, v{b+r}, v{b+4+r}\nv_add_f32 v{b+8+r}, v{b+8+r}, v{b+12+r}\nv_add_f32 v{b+r}, v{b+r}, v{b+8+r}")
        A(f"buffer_store_dwordx4 {vr(b,4)}, v{3+h}, s[24:27], 0 offen sc1")
    stamp_out(A, 0)

LAT = opt('lat', 0)
def aux_job(A):
    HP = 1312
    A("s_lshl_b32 s45, s43, 5\ns_lshl_b32 s46, s42, 2\ns_add_u32 s45, s45, s46")
    A("v_lshrrev_b32 v2, 4, v1\nv_add_u32 v3, s45, v2\nv_mul_u32_u24 v3, 1280, v3\nv_and_b32 v4, 15, v1\nv_lshl_add_u32 v3, v4, 4, v3\ns_waitcnt lgkmcnt(0)")
    srd(A, 16, 4, SZ_X)
    for i in range(5): A(f"buffer_load_dwordx4 {vr(16+4*i,4)}, v3, s[16:19], 0 offen offset:{256*i}")
    if opt('px', 0): A(f"s_xor_b32 s48, s43, 8\ns_mul_i32 s48, s48, 40960\nv_lshlrev_b32 v5, 7, v0\nv_mov_b32 v7, {OOB}\nv_cmp_gt_u32 vcc, 320, v0\nv_cndmask_b32 v5, v7, v5, vcc\nbuffer_load_dword v241, v5, s[16:19], s48 offen")
    srd(A, 24, 14, SZ_X+16384, WS_HT)
    if not LAT & 1:
        srd(A, 28, 12, SZ_WO)
        A("s_mul_i32 s48, s96, 102400\ns_mul_i32 s50, s97, 160\ns_add_u32 s48, s48, s50")
        for i in range(2):
            A(f"v_add_u32 v5, {512*i}, v0\nv_mul_u32_u24 v6, 6554, v5\nv_lshrrev_b32 v6, 16, v6\nv_mul_u32_u24 v6, 1120, v6\nv_lshl_add_u32 v6, v5, 4, v6")
            if i: A(f"v_mov_b32 v7, {OOB}\nv_cmp_gt_u32 vcc, 800, v5\nv_cndmask_b32 v6, v7, v6, vcc")
            A(f"s_lshl_b32 s50, s42, 10\ns_add_u32 m0, s50, {XB+20480+8192*i}\nbuffer_load_dwordx4 v6, s[28:31], s48 offen lds")
    if not LAT & 2:
        srd(A, 36, 84, SZ_W1)
        A("s_and_b32 s50, s41, 3\ns_lshl_b32 s50, s50, 9\nv_add_u32 v5, s50, v0\nv_mul_u32_u24 v5, 3456, v5\ns_lshl_b32 s50, s96, 7\nbuffer_load_dword v240, v5, s[36:39], s50 offen")
    A("s_mov_b32 s55, 0x3f803f80")
    A(f"v_add_u32 v5, s46, v2\nv_mul_u32_u24 v5, {HP}, v5\nv_lshl_add_u32 v5, v4, 4, v5")
    A(f"v_bfe_u32 v3, v1, 2, 2\nv_and_b32 v6, 3, v1\nv_lshl_add_u32 v7, v2, 3, v3\nv_mul_u32_u24 v7, {HP}, v7\nv_lshl_add_u32 v7, v6, 3, v7\ns_lshl_b32 s50, s42, 5\nv_add_u32 v7, s50, v7")
    A("v_lshlrev_b32 v40, 6, v4\nv_lshl_add_u32 v40, v2, 4, v40\ns_mul_i32 s50, s43, 40960\ns_lshl_b32 s51, s42, 10\ns_add_u32 s50, s50, s51")
    def red(r):
        for m in ("quad_perm:[1,0,3,2]", "quad_perm:[2,3,0,1]", "row_half_mirror", "row_mirror"):
            for q in r: A(f"v_add_f32_dpp v{q}, v{q}, v{q} {m} row_mask:0xf bank_mask:0xf")
    A(f"s_waitcnt vmcnt({opt('px', 0)+[3,1,2,0][LAT]})")
    stamp(A, 2)
    for ln in range(2):
        for r in range(8, 12): A(f"v_mov_b32 v{r}, 0")
        for r in range(20):
            A(f"v_dot2c_f32_bf16 v{8+(r&1)}, s55, v{16+r}\nv_dot2c_f32_bf16 v{10+(r&1)}, v{16+r}, v{16+r}")
        A("v_add_f32 v8, v8, v9\nv_add_f32 v10, v10, v11")
        red((8, 10))
        ln_scalars(A, 8, 10, 14, 12, 9)
        if ln == 0: A("v_add_u32 v9, s46, v2\nv_lshlrev_b32 v9, 2, v9\nv_add_u32 v9, 42240, v9\nds_write2_b32 v9, v14, v12 offset1:32")
        A("v_mul_f32 v14, v14, v12\nv_sub_f32 v14, 0, v14\nv_mov_b32 v13, v12\nv_mov_b32 v15, v14")
        for r in range(20):
            t = 60+2*(r&7)
            A(f"v_lshlrev_b32 v{t}, 16, v{16+r}\nv_and_b32 v{t+1}, 0xffff0000, v{16+r}")
            A(f"v_pk_fma_f32 {vr(t,2)}, {vr(t,2)}, v[12:13], v[14:15]\nv_cvt_pk_bf16_f32 v{16+r}, v{t}, v{t+1}")
    for i in range(5): A(f"ds_write_b128 v5, {vr(16+4*i,4)} offset:{256*i}")
    stamp(A, 3)
    A("s_waitcnt lgkmcnt(0)\ns_barrier")
    A(f"s_cmp_lg_u32 s42, 3\ns_cbranch_scc1 ax_ns\nv_lshlrev_b32 v9, 2, v1\nds_read_b32 v8, v9 offset:42240\ns_lshl_b32 s51, s43, 8\ns_add_u32 s51, s51, {SZ_X}\ns_waitcnt lgkmcnt(0)\nbuffer_store_dword v8, v9, s[24:27], s51 offen sc1\nax_ns:")
    for i in range(5):
        for hh in range(2): A(f"ds_read_b64_tr_b16 {vr(16+4*i+2*hh,2)}, v7 offset:{256*i+hh*4*HP}")
    for i in range(5):
        A(f"s_waitcnt lgkmcnt({8-2*i})\nbuffer_store_dwordx4 {vr(16+4*i,4)}, v40, s[24:27], s50 offen sc1\ns_add_u32 s50, s50, 8192")
def aux_wo(A):
    srd(A, 36, 14, SZ_UW, WS_UW)
    A(f"v_and_b32 v6, 3, v1\nv_and_b32 v4, 15, v1\nv_lshrrev_b32 v2, 4, v1\nv_bfe_u32 v3, v1, 2, 2\nv_lshl_add_u32 v8, v2, 3, v3\nv_mul_u32_u24 v8, 160, v8\nv_lshl_add_u32 v8, v6, 3, v8\nv_add_u32 v8, {XB+20480}, v8")
    A("v_mul_u32_u24 v9, 4736, v4\nv_lshl_add_u32 v9, v2, 4, v9\ns_mul_i32 s49, s97, 378880\ns_mul_i32 s44, s96, 160\ns_add_u32 s49, s49, s44\ns_add_u32 s49, s49, 3456\nv_add_u32 v9, s49, v9")
    A(f"v_mov_b32 v11, {OOB}")
    for m in range(4):
        A(f"s_add_u32 s44, s42, {4*m}\ns_min_u32 s44, s44, 14\ns_mul_i32 s51, s44, 86\ns_lshr_b32 s51, s51, 8\ns_mul_i32 s52, s51, 3\ns_sub_u32 s52, s44, s52")
        A(f"s_mul_i32 s53, s52, 5120\ns_lshl_b32 s47, s51, 5\ns_add_u32 s53, s53, s47\nv_add_u32 v10, s53, v8\nds_read_b64_tr_b16 {vr(60+4*m,2)}, v10\nds_read_b64_tr_b16 {vr(62+4*m,2)}, v10 offset:640")
        A(f"s_mul_i32 s53, s51, {16*4736}\ns_lshl_b32 s47, s52, 6\ns_add_u32 s53, s53, s47\nv_add_u32 v{50+m}, s53, v9\ns_cmp_eq_u32 s52, 2\ns_cselect_b32 s47, 32, 64\nv_cmp_gt_u32 vcc, s47, v1\nv_cndmask_b32 v{50+m}, v11, v{50+m}, vcc")
    A("s_waitcnt lgkmcnt(0)")
    for m in range(4): A(f"buffer_store_dwordx4 {vr(60+4*m,4)}, v{50+m}, s[36:39], 0 offen sc1")

def core_cons(A, L, NK, t_is_A, slot0, pub, mid):
    NS = (NK+1)//2
    stamp(A, 0)
    A(f"s_and_b32 s45, s42, 1\ns_lshl_b32 s45, s45, 1\ns_lshr_b32 s46, s42, 1\ns_or_b32 s45, s45, s46\ns_mul_i32 s46, s46, {SUB}")
    A("v_lshrrev_b32 v2, 4, v1\nv_bfe_u32 v3, v1, 2, 2\nv_and_b32 v4, 3, v1\nv_lshl_add_u32 v5, v2, 3, v3\nv_lshlrev_b32 v5, 7, v5\nv_lshl_add_u32 v5, v4, 3, v5\nv_add_u32 v5, s46, v5")
    A("v_lshrrev_b32 v6, 1, v3\nv_and_b32 v7, 1, v2\nv_lshl_or_b32 v6, v7, 1, v6\nv_xor_b32 v6, s45, v6\nv_lshl_add_u32 v20, v6, 5, v5\nv_xor_b32 v6, 1, v6\nv_lshl_add_u32 v21, v6, 5, v5")
    A("s_add_u32 s46, s46, 8192\nv_and_b32 v3, 15, v1\nv_lshrrev_b32 v4, 1, v3\nv_xor_b32 v4, v4, v2\nv_lshlrev_b32 v5, 7, v3\nv_add_u32 v5, s46, v5\nv_lshl_add_u32 v22, v4, 4, v5\nv_xor_b32 v4, 4, v4\nv_lshl_add_u32 v23, v4, 4, v5")
    for r in range(96, 136): A(f"v_mov_b32 v{r}, 0")
    SET = [136, 192]
    def readlist(p):
        b = SET[p]; R = []
        for ks in range(2):
            for tt in range(2):
                for hh in range(2): R.append(f"ds_read_b64_tr_b16 {vr(b+8*ks+4*tt+2*hh,2)}, v{24+tt} offset:{ks*4096+hh*512}")
            for rt in range(5): R.append(f"ds_read_b128 {vr(b+16+20*ks+4*rt,4)}, v{26+ks} offset:{2048*rt}")
        return R
    def radv():
        for j in range(4): A(f"v_add_u32 v{24+j}, s54, v{20+j}")
        A(f"s_add_u32 s54, s54, {CSLOT}\ns_cmp_ge_u32 s54, s48\ns_cselect_b32 s54, 0, s54")
    A(f"s_mov_b32 s54, {slot0*CSLOT}\ns_mov_b32 s50, 0\ns_mov_b32 s48, {3*CSLOT}")
    if t_is_A and opt('r4', 1): A(f"s_cmp_eq_u32 s98, 3\ns_cselect_b32 s48, {4*CSLOT}, s48")
    radv()
    stamp(A, 1)
    if pub and not opt('od', 1):
        A(f"s_cmp_lg_u32 s98, 1\ns_cbranch_scc1 {L}_no\ns_waitcnt vmcnt(0)"); atom(A, None, 58, 59); A(f"s_mov_b32 s59, 0\n{L}_no:")
    publish(A, L)
    mid()
    if pub: pub()
    stamp(A, 4)
    A("s_barrier\ns_barrier")
    stamp(A, 2)
    for r in readlist(0): A(r)
    radv()
    def body(p):
        b = SET[p]
        if pub and p: A(f"s_cmp_eq_u32 s50, s60\ns_cbranch_scc1 {L}_def\n{L}d_np:")
        A(f"s_waitcnt lgkmcnt(0)\ns_barrier")
        R = readlist(1-p); i = 0
        for ks in range(2):
            for rt in range(5):
                for tt in range(2):
                    acc = vr(96+20*tt+4*rt, 4); T = vr(b+8*ks+4*tt, 4); K = vr(b+16+20*ks+4*rt, 4)
                    if t_is_A: A(f"v_mfma_f32_16x16x32_bf16 {acc}, {T}, {K}, {acc}")
                    else: A(f"v_mfma_f32_16x16x32_bf16 {acc}, {K}, {T}, {acc}")
                    for _ in range(RPM[i]):
                        if R: A(R.pop(0))
                    if i == 16: radv()
                    i += 1
        assert not R
        A("s_add_u32 s50, s50, 1")
    A(f"{L}_loop:")
    body(0)
    A(f"s_cmp_ge_u32 s50, {NS}\ns_cbranch_scc1 {L}_done")
    body(1)
    A(f"s_cmp_lt_u32 s50, {NS}\ns_cbranch_scc1 {L}_loop")
    A(f"{L}_done:\ns_waitcnt vmcnt(0) lgkmcnt(0)")
    stamp(A, 3)
    A(f"v_lshlrev_b32 v2, 4, v1\nv_add_u32 v2, {XB}, v2\ns_mul_i32 s45, s42, 5120\nv_add_u32 v3, s45, v2\ns_xor_b32 s46, s42, 2\ns_mul_i32 s46, s46, 5120\nv_add_u32 v4, s46, v2")
    for rt in range(5): A(f"ds_write_b128 v3, {vr(116+4*rt,4)} offset:{1024*rt}")
    A("s_waitcnt lgkmcnt(0)\ns_barrier")
    for rt in range(5): A(f"ds_read_b128 {vr(136+4*rt,4)}, v4 offset:{1024*rt}")
    A("s_waitcnt lgkmcnt(0)")
    for r in range(20): A(f"v_add_f32 v{96+r}, v{96+r}, v{136+r}")
RPM = [2,1,2,1,2,1,2,1,2,1,2,1,0,0,0,0,0,0,0,0]

def o_cons(A):
    PO = 176; OB = XB+4096
    A("s_lshl_b32 s45, s43, 4\ns_lshl_b32 s46, s44, 2\ns_add_u32 s45, s45, s46\ns_add_u32 s45, s45, s42\ns_mul_i32 s45, s45, 20480\nv_lshlrev_b32 v7, 4, v1")
    for i in range(20):
        A(f"buffer_load_dwordx4 {vr(16+4*i,4)}, v7, s[20:23], s45 offen offset:{1024*(i&3)} sc1")
        if i & 3 == 3: A("s_add_u32 s45, s45, 4096")
    A("v_and_b32 v6, 31, v1\nv_lshrrev_b32 v8, 5, v1\nv_lshlrev_b32 v9, 3, v8\nv_mov_b32 v5, "+str(XB+3584))
    for et in range(3):
        A(f"v_add_u32 v2, {32*et}, v6\nv_mul_u32_u24 v{10+et}, 40, v2\nv_add_u32 v{10+et}, {XB}, v{10+et}\nv_mul_u32_u24 v3, 3277, v2\nv_lshrrev_b32 v3, 16, v3\nv_mul_u32_u24 v3, 20, v3\nv_sub_u32 v{13+et}, v9, v3")
    A("v_and_b32 v2, 3, v1\nv_bfe_u32 v3, v1, 3, 2\nv_lshl_add_u32 v2, v3, 2, v2\nv_and_b32 v3, 4, v1\nv_lshl_add_u32 v2, v2, 3, v3\nv_mul_u32_u24 v3, 3277, v2\nv_lshrrev_b32 v3, 16, v3\nv_mul_u32_u24 v3, 20, v3\nv_sub_u32 v252, v9, v3")
    steps = [(0,0),(0,1),(0,2),(1,1),(1,2),(1,3),(1,4),(2,3),(2,4)]
    AD = 224
    for i,(et,j) in enumerate(steps):
        for hq in range(2):
            A(f"v_add_u32 v2, {16*j+4*hq}, v{13+et}\nv_lshl_add_u32 v3, v2, 1, v{10+et}\nv_cmp_gt_u32 vcc, 20, v2\nv_cndmask_b32 v{AD+2*i+hq}, v5, v3, vcc")
    for j in range(5):
        for hq in range(2):
            dq = 16*j+4*hq
            A(f"v_add_u32 v2, {dq}, v252\nv_lshlrev_b32 v3, 1, v9\nv_add_u32 v3, {XB+3200+2*dq}, v3\nv_cmp_gt_u32 vcc, 20, v2\nv_cndmask_b32 v{AD+18+2*j+hq}, v5, v3, vcc")
    A("v_mov_b32 v96, 0"); poll_check(A, "cO2", "s60", 0x1010, 8, "s42", 96); A("s_barrier")
    A("s_mul_i32 s45, s43, 6720\nv_lshlrev_b32 v2, 4, v0\nv_add_u32 v3, s45, v2")
    A(f"v_add_u32 v4, 4096, v3\nv_mov_b32 v5, {OOB}\nv_cmp_gt_u32 vcc, 164, v0\nv_cndmask_b32 v4, v5, v4, vcc\ns_mov_b32 s46, 0")
    for i in range(16):
        A(f"buffer_load_dwordx4 {vr(96+8*i,4)}, v3, s[16:19], s46 offen sc1\nbuffer_load_dwordx4 {vr(100+8*i,4)}, v4, s[16:19], s46 offen sc1\ns_add_u32 s46, s46, {8*6720}")
    stamp(A, 1)
    for i in range(1, 16):
        A(f"s_waitcnt vmcnt({2*(15-i)})")
        for r in range(4): A(f"v_pk_add_f32 {vr(96+2*r,2)}, {vr(96+2*r,2)}, {vr(96+8*i+2*r,2)}")
    stamp(A, 2)
    for r in range(4): A(f"v_cvt_pk_bf16_f32 v{104+r}, v{96+2*r}, v{96+2*r+1}")
    A(f"v_lshlrev_b32 v2, 3, v0\nv_add_u32 v2, {XB}, v2\nds_write_b64 v2, v[104:105]\nds_write_b64 v2, v[106:107] offset:2048")
    A("s_waitcnt lgkmcnt(0)\ns_barrier")
    for i in range(28): A(f"ds_read_b64 {vr(96+2*i,2)}, v{AD+i}")
    for r in range(16): A(f"v_mov_b32 v{152+r}, {f2u(1e-6)}")
    A(f"s_mul_i32 s45, s42, {64*PO}\ns_add_u32 s45, s45, {OB}\nv_mul_u32_u24 v2, {PO}, v6\nv_add_u32 v2, s45, v2\nv_add_u32 v2, v2, v9")
    A(f"v_lshrrev_b32 v3, 4, v1\nv_bfe_u32 v4, v1, 1, 1\nv_lshl_add_u32 v3, v3, 1, v4\nv_bfe_u32 v4, v1, 2, 2\nv_lshl_add_u32 v5, v3, 3, v4\nv_mul_u32_u24 v5, {PO}, v5\nv_and_b32 v4, 1, v1\nv_lshl_add_u32 v5, v4, 3, v5\nv_add_u32 v5, s45, v5")
    A("s_mul_i32 s46, s43, 80\nv_and_b32 v7, 7, v1\nv_add_u32 v7, s46, v7\nv_lshlrev_b32 v7, 12, v7\nv_lshrrev_b32 v3, 3, v1\nv_lshl_add_u32 v7, v3, 4, v7\ns_lshl_b32 s46, s44, 10\ns_lshl_b32 s47, s42, 8\ns_add_u32 s46, s46, s47\nv_add_u32 v7, s46, v7")
    A("s_waitcnt vmcnt(0) lgkmcnt(0)")
    stamp(A, 3)
    N = [168, 184, 200]; D = 216
    def fin(b, et):
        R = 232+10*(b&1); W = []
        for q in range(4 if et < 2 else 2):
            n = N[et]+4*q
            W += [f"v_mul_f32 v{n+c}, v{n+c}, v{R+4*et+q}" for c in range(4)]
            W += [f"v_cvt_pk_bf16_f32 v{n}, v{n}, v{n+1}", f"v_cvt_pk_bf16_f32 v{n+1}, v{n+2}, v{n+3}", f"ds_write_b64 v2, {vr(n,2)} offset:{32*(b&1)*PO+64*et+16*q}"]
        return W
    def trr(h): return [f"ds_read_b64_tr_b16 {vr(16+40*h+4*i+2*hh,2)}, v5 offset:{4*hh*PO+16*i}" for i in range(10) for hh in range(2)]
    def sto(h):
        W = []
        for i in range(10): W += [f"s_mov_b32 s46, {32768*i}", f"buffer_store_dwordx4 {vr(16+40*h+4*i,4)}, v7, s[24:27], s46 offen offset:{128*h} sc1"]
        return W
    def emit(M, F, skip):
        per = -(-len(F)//max(1, len(M)-skip))
        for i, m in enumerate(M):
            A(m)
            if i >= skip:
                for f in F[(i-skip)*per:(i-skip+1)*per]: A(f)
    for b in range(4):
        pq = lambda j: vr(16+20*b+4*j, 4)
        emit([f"v_mfma_f32_32x32x16_bf16 {vr(D,16)}, {vr(132+4*j,4)}, {pq(j)}, {vr(D,16) if j else vr(152,16)}" for j in range(5)], fin(b-1,1)+fin(b-1,2) if b else [], 0)
        M = []
        for i,(et,j) in enumerate(steps):
            first = i == 0 or steps[i-1][0] != et
            M.append(f"v_mfma_f32_32x32x16_bf16 {vr(N[et],16)}, {vr(96+4*i,4)}, {pq(j)}, {'0' if first else vr(N[et],16)}")
        rc = [f"v_rcp_f32 v{232+10*(b&1)+r}, v{D+r}" for r in range(10)]
        emit(M[:4], (["s_waitcnt lgkmcnt(0)"]+trr(0) if b == 2 else []) + rc, 0 if b == 2 else 1)
        if b == 2: A("s_waitcnt lgkmcnt(0)")
        emit(M[4:], fin(b, 0) + (sto(0)[:10] if b == 2 else sto(0)[10:] if b == 3 else []), 0)
    for f in fin(3,1)+fin(3,2)+["s_waitcnt lgkmcnt(0)"]+trr(1)+["s_waitcnt lgkmcnt(0)"]+sto(1): A(f)
    stamp_out(A, 1)

class Stream:
    def __init__(s, A, items, adv, prep): s.A, s.items, s.adv, s.prep = A, items, adv, prep
    def issue(s, first=False, nsl=3):
        A = s.A
        for i, (v, sd, so, base, lo, mod) in enumerate(s.items):
            if first: s.prep(i)
            A(f"s_add_u32 m0, s{base}, {lo}\nbuffer_load_dwordx4 v{v}, {sr(sd)}, s{so} offen {mod}lds")
        A("s_add_u32 s58, s58, 1"); s.adv()
        A(f"s_add_u32 s59, s59, {CSLOT}\ns_cmp_ge_u32 s59, {nsl*CSLOT}\ns_cselect_b32 s59, 0, s59\ns_add_u32 s53, s59, s60\ns_add_u32 s57, s59, s61")
WS_Z = 0xF00000; ZS = 256
def poll_issue(A, L, off, sd=8, w="s49"):
    A(f"s_cmp_lg_u32 {w}, 0\ns_cbranch_scc1 {L}_pi\nbuffer_load_dword v34, off, {sr(sd)}, {off} sc1\n{L}_pi:")
def poll_check(A, L, off, tgt, sd=8, w="s49", v=34):
    A(f"s_cmp_lg_u32 {w}, 0\ns_cbranch_scc1 {L}_ok\ns_mov_b32 s63, 0x40000\n{L}_chk:\nv_readfirstlane_b32 s55, v{v}\ns_nop 1\ns_cmp_ge_u32 s55, {tgt}\ns_cbranch_scc1 {L}_ok")
    A(f"s_sub_u32 s63, s63, 1\ns_cbranch_scc1 {L}_ok\nbuffer_load_dword v{v}, off, {sr(sd)}, {off} sc1\ns_waitcnt vmcnt(0)\ns_branch {L}_chk\n{L}_ok:")
def a_stream(A, kind):
    A("s_lshl_b32 s45, s43, 7\ns_lshl_b32 s46, s49, 5\ns_add_u32 s45, s45, s46\ns_mul_i32 s51, s45, 1280\ns_mov_b32 s52, s47")
    A("v_lshrrev_b32 v2, 3, v1\nv_mul_u32_u24 v2, 1280, v2\nv_lshrrev_b32 v3, 4, v1\nv_and_b32 v4, 7, v1\nv_xor_b32 v3, v3, v4\nv_lshl_add_u32 v10, v3, 4, v2")
    A("s_lshl_b32 s60, s49, 12\ns_mul_i32 s61, s49, 5120\ns_add_u32 s61, s61, 16384\ns_mul_i32 s46, s49, 320")
    A("s_mov_b32 s58, 0\ns_mov_b32 s59, 0\ns_mov_b32 s53, s60\ns_mov_b32 s57, s61")
    def prep(i):
        if i == 0: A("s_waitcnt lgkmcnt(0)"); srd(A, 16, 4, SZ_X); stamp(A, 1)
        if i == 1: A(f"v_xor_b32 v11, 64, v10\nv_add_u32 v11, {8*1280}, v11")
        if i in (2, 3): A(f"v_add_u32 v{10+i}, {16*1280}, v{8+i}")
        if i == 4:
            srd(A, 20, 6, SZ_WQKV)
            A(f"s_movk_i32 s62, {1280 if kind == 'kv' else 3520}\ns_movk_i32 s63, 1120\nv_add_u32 v5, s46, v1")
        if i >= 4:
            if i > 4: A("v_add_u32 v5, 64, v5")
            if kind == "kv":
                A(f"v_mul_u32_u24 v6, 6554, v5\nv_lshlrev_b32 v7, 4, v5\nv_lshrrev_b32 v8, 16, v6\nv_lshrrev_b32 v6, 17, v6\nv_mad_u32_u24 v7, v8, s63, v7\nv_mad_u32_u24 v{10+i}, v6, s62, v7")
            else:
                A(f"v_mul_u32_u24 v6, 3277, v5\nv_lshlrev_b32 v7, 4, v5\nv_lshrrev_b32 v6, 16, v6\nv_mad_u32_u24 v{10+i}, v6, s62, v7")
    items = [(10+m, 16, 51, 53, m*1024, "") for m in range(4)] + [(14+m, 20, 52, 57, m*1024, "") for m in range(5)]
    if STAMP and opt('now', 0): items = items[:4] + [(10+m%4, 16, 51, 57, m*1024, "") for m in range(5)]
    return Stream(A, items, lambda: A(f"s_add_u32 s51, s51, 128\ns_add_u32 s52, s52, {64*3840}"), prep)
def g_stream(A, job):
    tp, kp, ks = (3456, 64, 81920) if job == "B" else (4096, 4736, 128)
    def setup():
        if job == "B":
            srd(A, 16, 84, SZ_W1); srd(A, 20, 14, SZ_X, WS_HT)
            A(f"s_lshl_b32 s47, s96, 7\ns_mul_i32 s48, s97, {80*64}")
        else:
            srd(A, 16, 88, SZ_W2); srd(A, 20, 14, SZ_UW, WS_UW); srd(A, 36, 14, SZ_X, WS_OT)
            A(f"s_lshl_b32 s47, s40, 2\ns_and_b32 s45, s41, 3\ns_add_u32 s47, s47, s45\ns_lshl_b32 s47, s47, 7\ns_lshr_b32 s48, s41, 2\ns_mul_i32 s48, s48, {80*4736}")
        A(f"s_and_b32 s45, s49, 1\ns_lshr_b32 s56, s49, 1\ns_mul_i32 s46, s45, {32*tp}\ns_add_u32 s47, s47, s46\ns_mul_i32 s46, s45, {40*kp}\ns_add_u32 s48, s48, s46")
        A(f"s_mul_i32 s60, s56, {SUB}\ns_mul_i32 s46, s45, 5120\ns_add_u32 s61, s60, s46\ns_add_u32 s61, s61, 8192\ns_lshl_b32 s46, s45, 12\ns_add_u32 s60, s60, s46\ns_lshl_b32 s45, s45, 2")
        A(f"s_mul_i32 s51, s56, {64*tp}\ns_mul_i32 s52, s56, {ks}\ns_mov_b32 s58, 0\ns_add_u32 s53, s59, s60\ns_add_u32 s57, s59, s61")
        A("v_lshrrev_b32 v2, 3, v1\nv_and_b32 v4, 7, v1\nv_bfe_u32 v3, v1, 4, 1\nv_lshlrev_b32 v3, 1, v3")
        A(f"v_mul_u32_u24 v5, {tp}, v2\nv_add_u32 v5, s47, v5\nv_xor_b32 v6, v3, v4\nv_lshl_add_u32 v10, v6, 4, v5\nv_xor_b32 v6, 4, v6\nv_lshl_add_u32 v11, v6, 4, v5\nv_add_u32 v11, {8*tp}, v11")
        A(f"v_add_u32 v12, {16*tp}, v10\nv_add_u32 v13, {16*tp}, v11")
        A(f"v_lshrrev_b32 v3, 4, v1\nv_xor_b32 v3, v3, v4\nv_xor_b32 v3, s45, v3\nv_mul_u32_u24 v7, {kp}, v2\nv_add_u32 v7, s48, v7\nv_lshl_add_u32 v14, v3, 4, v7\nv_xor_b32 v3, 4, v3\nv_lshl_add_u32 v15, v3, 4, v7\nv_add_u32 v15, {8*kp}, v15")
        if job == "B": A(f"v_lshrrev_b32 v3, 2, v3\nv_mul_u32_u24 v8, {40960-64}, v3\nv_add_u32 v15, v15, v8\nv_xor_b32 v3, 1, v3\nv_mul_u32_u24 v8, {40960-64}, v3\nv_add_u32 v14, v14, v8")
        for m in range(2, 5): A(f"v_add_u32 v{14+m}, {16*kp}, v{12+m}")
    def adv():
        A(f"s_add_u32 s51, s51, {128*tp}\ns_add_u32 s52, s52, {2*ks}\ns_add_u32 s56, s56, 2")
        if job == "C":
            A(f"s_sub_u32 s45, s56, 27\ns_mul_i32 s46, s45, {64*tp}\ns_cmp_lt_u32 s45, 2\ns_cselect_b32 s16, s36, s16\ns_cselect_b32 s17, s37, s17\ns_cselect_b32 s18, s38, s18\ns_cselect_b32 s51, s46, s51")
            A(f"s_cmp_ge_u32 s56, 37\ns_cselect_b32 s52, {OOB}, s52")
    items = []
    for m in range(5):
        if m < 4: items.append((10+m, 16, 51, 53, m*1024, "sc1 " if job == "C" else ""))
        items.append((14+m, 20, 52, 57, m*1024, "sc1 "))
    st = Stream(A, items, adv, None); st.setup = setup
    return st
def pf_w1(A):
    srd(A, 24, 84, SZ_W1)
    A(f"s_and_b32 s45, s41, 3\ns_lshl_b32 s45, s45, 9\ns_sub_u32 s45, s45, 256\nv_add_u32 v2, s45, v0\nv_mul_u32_u24 v2, 3456, v2\ns_lshl_b32 s45, s96, 7\nv_add_u32 v2, s45, v2\ns_mov_b32 s45, {256*3456}")
    A("buffer_load_dword v240, v2, s[24:27], 0 offen\nbuffer_load_dword v241, v2, s[24:27], s45 offen")
    return 2
def pf_w1h(A, h):
    srd(A, 24, 84, SZ_W1)
    A(f"s_and_b32 s45, s41, 3\ns_mul_i32 s45, s45, 208\ns_add_u32 s45, s45, {384+832*h-256}\nv_add_u32 v2, s45, v0\nv_mul_u32_u24 v2, 3456, v2\ns_lshl_b32 s45, s96, 7")
    A(f"v_mov_b32 v4, {OOB}\nv_cmp_gt_u32 vcc, {256+208}, v0\nv_cndmask_b32 v2, v4, v2, vcc\nbuffer_load_dword v{240+h}, v2, s[24:27], s45 offen")
def pf_w2(A, thr=256+216):
    srd(A, 24, 88, SZ_W2)
    A("s_lshr_b32 s45, s41, 2\ns_mul_i32 s45, s45, 216\ns_sub_u32 s45, s45, 256\nv_add_u32 v2, s45, v0\nv_lshlrev_b32 v2, 12, v2\ns_lshl_b32 s45, s40, 2\ns_and_b32 s46, s41, 3\ns_add_u32 s45, s45, s46\ns_lshl_b32 s45, s45, 7\nv_add_u32 v2, s45, v2")
    A(f"v_mov_b32 v4, {OOB}\nv_cmp_gt_u32 vcc, {thr}, v0\nv_cndmask_b32 v2, v4, v2, vcc\nbuffer_load_dword v242, v2, s[24:27], 0 offen")
    return 1
def pf_w2r(A, nr):
    srd(A, 24, 88, SZ_W2)
    A("s_sub_u32 s45, s35, 256\nv_add_u32 v2, s45, v0\nv_lshlrev_b32 v2, 12, v2\ns_lshl_b32 s45, s40, 2\ns_and_b32 s46, s41, 3\ns_add_u32 s45, s45, s46\ns_lshl_b32 s45, s45, 7")
    for j in range((nr+255)//256):
        if nr < 256*j+256: A(f"v_mov_b32 v4, {OOB}\nv_cmp_gt_u32 vcc, {256+nr-256*j}, v0\nv_cndmask_b32 v2, v4, v2, vcc")
        A(f"buffer_load_dword v{242+j}, v2, s[24:27], s45 offen\ns_add_u32 s45, s45, {256*4096}")
def masks(A):
    srd(A, 8, 14, 256*ZS, WS_Z); srd(A, 24, 94, 256)
    A(f"s_and_b32 s28, s40, 1\ns_lshl_b32 s28, s28, 7\ns_mul_i32 s29, s40, {ZS}\ns_lshr_b32 s30, s41, 2\ns_mul_i32 s30, s30, {8*ZS}\ns_add_u32 s30, s30, s29\ns_add_u32 s30, s30, {40*ZS}\ns_add_u32 s31, s30, {64*ZS}\ns_add_u32 s32, s30, {128*ZS}\ns_add_u32 s33, s29, {232*ZS}")
def stat_ld(A):
    srd(A, 24, 14, 16384, WS_HT+SZ_X)
    A(f"s_lshl_b32 s45, s49, 8\ns_add_u32 m0, s45, {P0_X+3072}\ns_lshl_b32 s46, s43, 10\ns_add_u32 s45, s45, s46\nv_lshlrev_b32 v9, 2, v1\nbuffer_load_dword v9, s[24:27], s45 offen sc1 lds")
def wo_ld(A):
    srd(A, 24, 12, SZ_WO)
    A("s_mul_i32 s45, s96, 102400\ns_mul_i32 s46, s97, 160\ns_add_u32 s45, s45, s46\ns_lshl_b32 s46, s49, 10")
    for i in range(4):
        A(f"v_add_u32 v5, {256*i-256}, v0\nv_mul_u32_u24 v6, 6554, v5\nv_lshrrev_b32 v6, 16, v6\nv_mul_u32_u24 v6, 1120, v6\nv_lshl_add_u32 v6, v5, 4, v6")
        if i == 3: A(f"v_mov_b32 v7, {OOB}\nv_cmp_gt_u32 vcc, 800, v5\nv_cndmask_b32 v6, v7, v6, vcc")
        A(f"s_add_u32 m0, s46, {XB+20480+4096*i}\nbuffer_load_dwordx4 v6, s[24:27], s45 offen lds")
def loaders(A):
    B = g_stream(A, "B"); C = g_stream(A, "C")
    W = "s_waitcnt vmcnt(9)"; WB = W + "\ns_barrier"
    for kind in ("kv", "q"):
        L = f"l{kind}"
        A(f"{L}:"); S = a_stream(A, kind)
        S.issue(True); S.issue(); A("v_and_b32 v6, 255, v0"); npo = bulk(A, 6); masks(A)
        A(f"s_waitcnt vmcnt({9+npo})\ns_barrier\n{L}_ld:"); S.issue(); A(f"{WB}\ns_cmp_lt_u32 s58, 8\ns_cbranch_scc1 {L}_ld")
        poll_issue(A, L+"i", "s28", 24); S.issue(); A(W); poll_check(A, L+"i", "s28", 1, 24); A("s_barrier")
        poll_issue(A, L+"h", "s29"); S.issue(); A(W); stamp(A, 2)
        if kind == "kv": A("s_mov_b32 s99, 1\ns_cmp_lg_u32 s98, 0\ns_cbranch_scc1 l_nob\ns_branch l_be")
        else: A("s_mov_b32 s99, 0")
    A("l_be:"); poll_check(A, "l_be", "s29", 64); A("s_barrier"); stat_ld(A)
    if opt('ep', 0):
        n = pf_w1(A); B.setup(); B.issue(); A(f"s_waitcnt vmcnt({9+n})\ns_barrier"); B.issue(); A("s_barrier\ns_barrier"); B.issue(); n = 0
    else:
        B.setup(); B.issue(); A(WB); B.issue(); A("s_barrier\ns_barrier"); B.issue()
        KH = opt('kh', 1)
        A("s_cmp_eq_u32 s99, 0\ns_cbranch_scc1 l_bq"); pf_w1h(A, 0)
        if not KH: pf_w1h(A, 1)
        A("s_barrier\ns_barrier\ns_branch l_bj\nl_bq:\ns_barrier"); pf_w1h(A, 0)
        if not KH: pf_w1h(A, 1)
        A("l_bj:")
        if KH: pf_w1h(A, 1)
        A("s_barrier\ns_waitcnt vmcnt(20)\ns_barrier\ns_waitcnt vmcnt(11)\ns_barrier"); B.issue(); A("s_waitcnt vmcnt(11)\ns_barrier")
    A("l_bl:"); B.issue(); A(f"{WB}\ns_cmp_lt_u32 s58, 15\ns_cbranch_scc1 l_bl")
    DC = opt('dc', 2); CP = opt('cp', 3)
    if not DC: poll_issue(A, "l_bp", "s30")
    B.issue(); A(W); stamp(A, 3)
    A("s_cmp_eq_u32 s98, 3\ns_cbranch_scc1 l_bx")
    if DC == 2:
        A("s_barrier"); C.setup(); A("s_waitcnt vmcnt(0)\ns_barrier"); poll_issue(A, "l_bp", "s30"); A("s_barrier\ns_waitcnt vmcnt(0)")
        poll_check(A, "l_ce", "s30", 8); A("s_barrier"); C.issue(); C.issue(); C.issue(); n = int(CP < 3); assert CP
    elif DC == 1:
        A("s_barrier"); poll_issue(A, "l_bp", "s30"); C.setup(); A("s_waitcnt vmcnt(0)\ns_barrier")
        poll_check(A, "l_ce", "s30", 8); A("s_barrier"); C.issue(); C.issue(); A("s_barrier"); C.issue(); n = int(CP < 3); assert CP
    elif opt('ep2', 0):
        poll_check(A, "l_ce", "s30", 8); A("s_barrier"); n = pf_w2(A); C.setup()
        C.issue(); A(f"s_waitcnt vmcnt({9+n})\ns_barrier"); C.issue(); A("s_barrier\ns_barrier"); C.issue(); n = 0
    else:
        poll_check(A, "l_ce", "s30", 8); A("s_barrier"); C.setup()
        C.issue(); A(WB); C.issue(); A("s_barrier\ns_barrier"); C.issue(); n = int(CP < 3)
        if not CP: pf_w2(A)
    A("s_barrier\nl_ce3:\ns_barrier")
    if CP in (1, 2): A(f"s_cmp_eq_u32 s98, 1\ns_cselect_b32 s35, {0 if CP == 2 else 472}, 472"); pf_w2(A, "s35")
    A(f"s_barrier\ns_waitcnt vmcnt({18+n})\ns_barrier\ns_waitcnt vmcnt({9+n})\ns_barrier")
    A("l_c0:\ns_mov_b32 s99, 0x0c0703\ns_mov_b32 s34, 0x202c08")
    A("l_cl:\ns_and_b32 s62, s99, 255\ns_cmp_lg_u32 s58, s62\ns_cbranch_scc1 l_c1"); poll_issue(A, "l_cq", "s31"); A("l_c1:"); C.issue(); A(W)
    A("s_add_u32 s62, s62, 1\ns_cmp_lg_u32 s58, s62\ns_cbranch_scc1 l_c2\ns_and_b32 s35, s34, 255"); poll_check(A, "l_cp", "s31", "s35")
    if STAMP and opt('cst', 0): A("s_mov_b64 s[64:65], s[66:67]\ns_mov_b64 s[66:67], s[68:69]\ns_mov_b64 s[68:69], s[70:71]\ns_memrealtime s[70:71]\ns_waitcnt lgkmcnt(0)")
    A("s_mov_b32 s31, s32\ns_mov_b32 s32, s33\ns_lshr_b32 s99, s99, 8\ns_lshr_b32 s34, s34, 8\nl_c2:\ns_barrier\ns_cmp_lt_u32 s58, 19\ns_cbranch_scc1 l_cl")
    stamp(A, 4)
    A("s_waitcnt vmcnt(0)\ns_barrier\ns_barrier"); stamp_out(A, 0); A("s_endpgm")
    A("l_nob:"); poll_check(A, "l_nb", "s29", 64); A("s_barrier"); stat_ld(A); A("s_waitcnt vmcnt(0)\ns_barrier")
    R0 = opt('r0', 512); RA = (1728-R0)//2; OE = opt('oe', 1)
    A("s_barrier\ns_barrier")
    if OE: A("s_mov_b32 s35, 0"); pf_w2r(A, R0)
    A("s_barrier\ns_cmp_lg_u32 s98, 1\ns_cbranch_scc1 l_clate")
    A(f"v_mov_b32 v34, 0\nv_mov_b32 v35, 163824\nds_write_b32 v35, v34\ns_mov_b32 s59, {2*CSLOT}"); C.setup()
    A("s_waitcnt lgkmcnt(0)\ns_barrier")
    if CP == 2: pf_w2(A)
    if CP == 3 and not OE: A("s_mov_b32 s35, 0"); pf_w2r(A, R0)
    A("s_barrier\ns_barrier\ns_barrier"); poll_check(A, "l_op", "s30", 8)
    A("s_cmp_lg_u32 s49, 0\ns_cbranch_scc1 l_ow\nv_mov_b32 v34, 1\nds_write_b32 v35, v34\nl_ow:\nds_read_b32 v34, v35\ns_waitcnt lgkmcnt(0)\nv_readfirstlane_b32 s55, v34\ns_nop 1\ns_cmp_eq_u32 s55, 0\ns_cbranch_scc1 l_ow")
    C.issue(); C.issue(); C.issue(); n and not CP and pf_w2(A); A("s_branch l_ce3")
    A("l_bx:\ns_barrier\ns_waitcnt vmcnt(0)\ns_barrier\ns_barrier\ns_barrier\ns_barrier")
    A(f"l_clate:\ns_mov_b32 s59, {2*CSLOT}"); C.setup(); A("v_mov_b32 v34, 0\ns_barrier")
    if CP == 3: A(f"s_cmp_lg_u32 s98, 3\ns_cbranch_scc1 l_np2\ns_cmp_ge_u32 s41, 28\ns_cselect_b32 s35, {RA}, 0\ns_add_u32 s35, s35, {R0}"); pf_w2r(A, RA); A("l_np2:")
    else: pf_w2(A)
    poll_check(A, "l_cx", "s30", 8); A("s_barrier")
    C.issue(); C.issue(); A(f"{WB}\ns_branch l_c0")
    A("laux:"); masks(A); A("v_mov_b32 v34, 0"); poll_check(A, "l_ai", "s28", 1, 24); A("s_waitcnt vmcnt(0)\ns_barrier")
    srd(A, 20, 6, SZ_WQKV); A("v_and_b32 v6, 255, v0"); bulk(A, 6)
    A(f"s_mov_b32 s59, {CSLOT}"); B.setup(); LAT & 2 and pf_w1(A); LAT & 1 and wo_ld(A); A("v_mov_b32 v34, 0\ns_barrier"); poll_check(A, "l_ax", "s29", 64); A("s_barrier"); stamp(A, 2)
    if opt('r4', 1):
        for _ in range(2): B.issue(nsl=4)
        A("l_b4:"); B.issue(nsl=4); A(f"s_waitcnt vmcnt(18)\ns_barrier\ns_cmp_lt_u32 s58, 16\ns_cbranch_scc1 l_b4\n{W}"); stamp(A, 3); A("s_branch l_bx")
        return
    B.issue(); B.issue(); n = pf_w2(A) if opt('e2', 0) else 0; A(f"s_waitcnt vmcnt({9+n})\ns_barrier\ns_branch l_bl")

def atom(A, L, o, m):
    if L: A(f"s_cmp_lg_u32 s42, 0\ns_cbranch_scc1 {L}_np")
    srd(A, 8, 14, 256*ZS, WS_Z)
    A(f"v_mul_u32_u24 v2, {ZS}, v1\nv_mov_b32 v3, s61\ns_mov_b32 exec_lo, s{m}\ns_mov_b32 exec_hi, 0\nbuffer_atomic_add v3, v2, s[8:11], s{o} offen sc1\ns_mov_b64 exec, -1")
def publish(A, L):
    A(f"s_cmp_eq_u32 s57, 0\ns_cbranch_scc1 {L}_p0\ns_waitcnt vmcnt(0)\n{L}_p0:\ns_barrier\ns_cbranch_scc1 {L}_np")
    atom(A, L, 56, 57); A(f"{L}_np:")

def main(A):
    k = KN
    A(f".globl {k}\n.p2align 8\n.type {k},@function\n{k}:\ns_cmp_ge_u32 s2, 256\ns_cbranch_scc1 k_end")
    for i in range(6): stamp(A, i)
    A("s_load_dwordx4 s[4:7], s[0:1], 0\ns_load_dwordx2 s[12:13], s[0:1], 16\ns_load_dwordx8 s[84:91], s[0:1], 32\ns_load_dwordx4 s[92:95], s[0:1], 64\ns_load_dwordx2 s[14:15], s[0:1], 80")
    A("v_and_b32 v1, 63, v0\nv_lshrrev_b32 v2, 6, v0\ns_and_b32 s40, s2, 7\ns_lshr_b32 s41, s2, 3\nv_readfirstlane_b32 s42, v2")
    A("s_lshr_b32 s46, s40, 1\ns_lshl_b32 s43, s46, 2\ns_and_b32 s45, s41, 3\ns_add_u32 s43, s43, s45")
    A("s_and_b32 s44, s40, 1\ns_lshl_b32 s97, s44, 2\ns_add_u32 s97, s97, s45\ns_lshr_b32 s45, s41, 2\ns_sub_u32 s49, s42, 4\ns_mov_b32 s98, 0\ns_mov_b32 s61, 1")
    A("s_cmp_ge_u32 s41, 24\ns_cbranch_scc1 r_aux\ns_cmp_ge_u32 s41, 16\ns_cbranch_scc1 r_q")
    A("s_lshl_b32 s44, s44, 2\ns_add_u32 s44, s44, s45\ns_mul_i32 s47, s44, 160\ns_add_u32 s47, s47, 1280")
    A("s_mul_i32 s96, s46, 3\ns_add_u32 s96, s96, s45\ns_add_u32 s96, s96, 16\ns_cmp_ge_u32 s96, 27\ns_cselect_b32 s98, 2, 0\ns_cmp_eq_u32 s45, 3\ns_cselect_b32 s98, 1, s98")
    A("s_cmp_lt_u32 s42, 4\ns_cbranch_scc1 ckv")
    loaders(A)
    A("r_q:\ns_lshl_b32 s96, s46, 1\ns_add_u32 s96, s96, s45\ns_add_u32 s96, s96, 4\ns_lshl_b32 s44, s44, 1\ns_add_u32 s44, s44, s45\ns_sub_u32 s44, s44, 4\ns_mul_i32 s47, s44, 320")
    A("s_cmp_ge_u32 s42, 4\ns_cbranch_scc1 lq")
    A(f"s_mul_i32 s56, s44, {8*ZS}\ns_add_u32 s56, s56, {8*ZS}\ns_mov_b32 s57, 255\ns_mov_b32 s58, {104*ZS}\ns_movk_i32 s61, 0x100")
    a_cons(A, "q"); A("s_branch cB")
    A("r_aux:\ns_lshl_b32 s96, s46, 1\ns_add_u32 s96, s96, s45\ns_sub_u32 s96, s96, 6\ns_mov_b32 s98, 3")
    A("s_sub_u32 s44, s41, 24\ns_lshl_b32 s43, s40, 3\ns_add_u32 s43, s43, s44")
    aux_job(A)
    A(f"s_cmp_ge_u32 s42, 4\ns_cbranch_scc1 laux\ns_mov_b32 s56, 0\ns_mov_b32 s57, 255\ns_mov_b32 s58, {40*ZS}")
    stamp(A, 4); publish(A, "ax"); stamp_out(A, 0); A("s_mov_b32 s57, 0\ns_branch cB")
    A("cO:"); stamp(A, 0); publish(A, "cO")
    A("s_lshl_b32 s45, s40, 2\ns_add_u32 s45, s45, s41\ns_sub_u32 s45, s45, 12\ns_and_b32 s43, s45, 7\ns_lshr_b32 s44, s45, 3")
    srd(A, 16, 14, SZ_KVP, WS_KVP); srd(A, 20, 14, SZ_X, WS_PQ); srd(A, 24, 14, SZ_X, WS_OT)
    A(f"s_lshl_b32 s60, s43, 2\ns_add_u32 s60, s60, s44\ns_mul_i32 s60, s60, {ZS}\ns_add_u32 s60, s60, {8*ZS}\ns_mul_i32 s58, s44, {2*ZS}\ns_add_u32 s58, s58, {232*ZS}\ns_mov_b32 s59, 3\ns_mov_b32 s57, 0\nv_mov_b32 v34, 0")
    srd(A, 8, 14, 256*ZS, WS_Z)
    poll_check(A, "cO", "s60", 0x1000, 8, "s42"); A("s_barrier")
    o_cons(A); A("s_branch cC")
    A(f"ckv:\ns_mul_i32 s56, s44, {4*ZS}\ns_add_u32 s56, s56, {8*ZS}\ns_mov_b32 s57, 15\ns_mov_b32 s58, {168*ZS}\ns_mov_b32 s59, 0")
    A("s_or_b32 s45, s2, s42\ns_cmp_lg_u32 s45, 0\ns_cbranch_scc1 ckv2\ns_waitcnt lgkmcnt(0)")
    srd(A, 8, 14, 256*ZS, WS_Z); srd(A, 24, 94, 256)
    A(f"v_mul_u32_u24 v2, {ZS}, v1\nv_mov_b32 v3, 0\nbuffer_store_dword v3, v2, s[8:11], 0 offen sc1\ns_mov_b32 s45, {64*ZS}\nbuffer_store_dword v3, v2, s[8:11], s45 offen sc1\ns_mov_b32 s45, {128*ZS}\nbuffer_store_dword v3, v2, s[8:11], s45 offen sc1\ns_mov_b32 s45, {192*ZS}\nbuffer_store_dword v3, v2, s[8:11], s45 offen sc1\nv_lshlrev_b32 v2, 7, v1\nv_mov_b32 v4, 1\ns_waitcnt vmcnt(0)\nbuffer_store_dword v4, v2, s[24:27], 0 offen sc1\nckv2:")
    a_cons(A, "kv")
    A("s_cmp_eq_u32 s98, 1\ns_cbranch_scc1 cO\ns_cmp_eq_u32 s98, 2\ns_cbranch_scc1 cC")
    A("cB:")
    def midB():
        A("s_mov_b32 s61, 1\ns_cmp_lg_u32 s98, 3\ns_cbranch_scc1 cB_nw"); aux_wo(A); A("cB_nw:")
        srd(A, 24, 14, SZ_UW, WS_UW); srd(A, 28, 86, 1728*2)
        A("s_and_b32 s45, s42, 1\ns_lshl_b32 s45, s45, 6\ns_lshr_b32 s46, s42, 1\ns_lshl_b32 s46, s46, 5\ns_add_u32 s45, s45, s46\ns_lshl_b32 s47, s96, 7\ns_add_u32 s45, s45, s47\nv_lshrrev_b32 v2, 4, v1\nv_lshlrev_b32 v2, 3, v2\nv_add_u32 v2, s45, v2")
        A("buffer_load_dwordx2 v[18:19], v2, s[28:31], 0 offen")
        A(f"v_subrev_u32 v2, s47, v2\nv_and_b32 v3, 15, v1\nv_mul_u32_u24 v3, 144, v3\nv_add_u32 v3, {XB+36864}, v3\nv_add_u32 v16, v2, v3")
        A(f"v_lshrrev_b32 v2, 3, v0\nv_and_b32 v3, 7, v0\nv_mul_u32_u24 v14, 144, v2\nv_lshl_add_u32 v14, v3, 4, v14\nv_add_u32 v14, {XB+36864}, v14")
        A(f"s_mul_i32 s45, s97, 80\nv_add_u32 v2, s45, v2\nv_mul_u32_u24 v2, 4736, v2\nv_lshl_add_u32 v2, v3, 4, v2\nv_add_u32 v15, s47, v2\nv_mov_b32 v3, {OOB}\nv_cmp_gt_u32 vcc, 128, v0\nv_cndmask_b32 v17, v3, v15, vcc")
    core_cons(A, "cB", 32, True, 1, None, midB)
    c0 = -2*0.7978845608028654*LOG2E
    A(f"s_mul_i32 s45, s97, {8*ZS}\ns_add_u32 s56, s45, s58\ns_cmp_eq_u32 s58, {168*ZS}\ns_cselect_b32 s57, 0, 255\ns_cselect_b32 s59, 255, 0\ns_add_u32 s58, s45, {168*ZS}")
    A(f"s_mov_b32 s62, {f2u(c0*0.044715)}\nv_mov_b32 v9, {f2u(c0)}\ns_mov_b32 s46, 0")
    for h in range(2): A(f"v_lshlrev_b32 v{32+2*h}, 16, v{18+h}\nv_and_b32 v{33+2*h}, 0xffff0000, v{18+h}")
    for r in range(20): A(f"v_add_f32 v{96+r}, v{96+r}, v{32+(r&3)}")
    for r in range(20): A(f"v_mul_f32 v{48+r}, v{96+r}, v{96+r}")
    for r in range(20): A(f"v_fma_f32 v{48+r}, v{48+r}, s62, v9")
    for r in range(20): A(f"v_mul_f32 v{48+r}, v{48+r}, v{96+r}")
    for r in range(20): A(f"v_exp_f32 v{48+r}, v{48+r}")
    for r in range(20): A(f"v_add_f32 v{48+r}, 1.0, v{48+r}")
    for rt in range(5):
        for r in range(4*rt, 4*rt+4): A(f"v_rcp_f32 v{48+r}, v{48+r}")
        for r in range(4*rt, 4*rt+4): A(f"v_mul_f32 v{96+r}, v{96+r}, v{48+r}")
        A(f"v_cvt_pk_bf16_f32 v{70+2*rt}, v{96+4*rt}, v{97+4*rt}\nv_cvt_pk_bf16_f32 v{71+2*rt}, v{98+4*rt}, v{99+4*rt}")
        A(f"ds_write_b64 v16, {vr(70+2*rt,2)} offset:{16*144*rt}")
    A("s_waitcnt lgkmcnt(0)\ns_barrier")
    for i in range(3): A(f"ds_read_b128 {vr(48+4*i,4)}, v14 offset:{32*144*i}")
    for i in range(3): A(f"s_waitcnt lgkmcnt({2-i})\nbuffer_store_dwordx4 {vr(48+4*i,4)}, v{17 if i == 2 else 15}, s[24:27], s46 offen sc1\ns_add_u32 s46, s46, {32*4736}")
    stamp_out(A, 1)
    A("cC:")
    def midC():
        srd(A, 24, 92, SZ_X); srd(A, 28, 4, SZ_X); srd(A, 32, 90, 4096)
        A("s_lshl_b32 s45, s40, 2\ns_and_b32 s46, s41, 3\ns_add_u32 s45, s45, s46\ns_lshl_b32 s45, s45, 6\ns_and_b32 s46, s42, 1\ns_lshl_b32 s46, s46, 5\ns_add_u32 s45, s45, s46\ns_lshr_b32 s46, s42, 1\ns_lshl_b32 s46, s46, 4\ns_add_u32 s45, s45, s46\nv_and_b32 v2, 15, v1\nv_add_u32 v2, s45, v2\nv_lshlrev_b32 v3, 1, v2")
        A("v_mul_u32_u24 v16, 1280, v2\nv_lshrrev_b32 v4, 4, v1\nv_lshl_add_u32 v16, v4, 3, v16\ns_lshr_b32 s45, s41, 2\ns_mul_i32 s45, s45, 160\nv_add_u32 v16, s45, v16")
        for rt in range(5): A(f"buffer_load_dwordx2 {vr(82+2*rt,2)}, v16, s[28:31], 0 offen offset:{32*rt}")
        A("buffer_load_ushort v92, v3, s[32:35], 0 offen")
    def pubC():
        A(f"s_cmp_lg_u32 s59, 0\ns_cselect_b32 s60, {opt('defat', 1)}, 0")
        if opt('od', 1): A(f"s_cmp_eq_u32 s98, 1\ns_cselect_b32 s60, {opt('od', 1)}, s60")
    core_cons(A, "cC", 37, False, 2, pubC, midC)
    A("v_lshlrev_b32 v92, 16, v92")
    for rt in range(5):
        a = 96+4*rt; x = 82+2*rt; t = 32+4*rt
        for h in range(2): A(f"v_lshlrev_b32 v{t+2*h}, 16, v{x+h}\nv_and_b32 v{t+2*h+1}, 0xffff0000, v{x+h}")
        for r in range(4): A(f"v_add_f32 v{a+r}, v{a+r}, v92")
        for r in range(4): A(f"v_add_f32 v{a+r}, v{a+r}, v{t+r}")
        A(f"v_cvt_pk_bf16_f32 v{x}, v{a}, v{a+1}\nv_cvt_pk_bf16_f32 v{x+1}, v{a+2}, v{a+3}")
        A(f"buffer_store_dwordx2 {vr(x,2)}, v16, s[24:27], 0 offen offset:{32*rt}")
    stamp_out(A, 2)
    A("k_end:\ns_endpgm\ncC_def:\ns_waitcnt vmcnt(0)"); atom(A, None, 58, 59); A("s_branch cCd_np")

KN = "m_kernel"
def build():
    assert all((c*3277)>>16 == c//20 for c in range(1280)) and all((c*6554)>>16 == c//10 for c in range(1280)) and all((c*52)>>8 == c//5 for c in range(25)) and all((c*4370)>>16 == c//15 for c in range(256))
    A = Asm(); main(A)
    hdr = "; generated by gen2.py (hand-written generator): one launch, per-workgroup job chain (qkv|LN) -> (token GEMM1|attn normalise) -> GEMM2+out-proj\n"
    hdr += f"; @launch kernel={KN} grid=(256,1,1) block=(512,1,1) lds=163840\n"
    hdr += '.amdgcn_target "amdgcn-amd-amdhsa--gfx950"\n.text\n'
    return hdr + A.finish() + f""".section .rodata,"a"
.p2align 6
.amdhsa_kernel {KN}
  .amdhsa_next_free_vgpr 256
  .amdhsa_next_free_sgpr 100
  .amdhsa_accum_offset 256
  .amdhsa_group_segment_fixed_size 0
  .amdhsa_kernarg_size 88
  .amdhsa_user_sgpr_count 2
  .amdhsa_user_sgpr_kernarg_segment_ptr 1
  .amdhsa_system_sgpr_workgroup_id_x 1
.end_amdhsa_kernel
"""
if __name__ == "__main__":
    STAMP = "stamp" in sys.argv
    out = sys.argv[1] if len(sys.argv) > 1 else f"cdna_kernels/{NAME}.s"
    open(out, "w").write(build())
```

```python
import sys
from asmlib import Asm
NAME = "parallel_sum__linear_attn_block__mixer_token_mlp__prompt"
WS_HT, WS_PQ, WS_UW, WS_OT, WS_KVP = 0xC00000, 0x280000, 0x500000, 0x800000, 0xB00000
SZ_X = 2048*640*2; SZ_WQKV = 640*1920*2; SZ_WO = 640*640*2; SZ_W1 = 2048*1728*2; SZ_W2 = SZ_W1
SZ_UW = 640*4736; SZ_KVP = 128*6720
OOB = 0x40000000
LOG2E = 1.4426950408889634
import struct, os
OPT = dict(kv.split('=') for kv in os.environ.get('GOPT','').split(',') if kv)
def opt(k, d): return int(OPT.get(k, d))
HTP = opt('htp', 4096); P2M = opt('p2m', 2); PF0 = opt('pf0', 1)
def f2u(x): return "0x%08x" % struct.unpack("<I", struct.pack("<f", x))[0]

def srd(A, d, p, size, off=0):
    if off:
        A(f"s_add_u32 s{d}, s{p}, {off}\ns_addc_u32 s{d+1}, s{p+1}, 0")
    else:
        A(f"s_mov_b32 s{d}, s{p}\ns_mov_b32 s{d+1}, s{p+1}")
    A(f"s_mov_b32 s{d+2}, {size}\ns_mov_b32 s{d+3}, 0x00020000")
def vr(b, n): return f"v[{b}:{b+n-1}]"
def sr(b, n=4): return f"s[{b}:{b+n-1}]"
XB = 110592; P0_X = XB + 28672; NS0 = 3; P0_SLOT = 36864; NSL = 3; SUB = 18432; CSLOT = 2*SUB
def bf16r(A, d, s):
    A(f"v_cvt_pk_bf16_f32 v{d}, v{s}, v{s}\nv_and_b32 v{d}, 0xffff0000, v{d}")
def halfsum(A, r, t):
    A(f"v_mov_b32 v{t}, v{r}\nv_permlane32_swap_b32 v{t}, v{r}\nv_add_f32 v{r}, v{t}, v{r}")
def ln_scalars(A, sx, sxx, mb, rs, t):
    A(f"v_mul_f32 v{sx}, {f2u(1/640)}, v{sx}\nv_mul_f32 v{sxx}, {f2u(1/640)}, v{sxx}")
    A(f"v_fma_f32 v{sxx}, -v{sx}, v{sx}, v{sxx}\nv_max_f32 v{sxx}, 0, v{sxx}")
    bf16r(A, mb, sx); bf16r(A, t, sxx)
    A(f"v_add_f32 v{t}, {f2u(1e-5)}, v{t}"); bf16r(A, t, t)
    A(f"v_sqrt_f32 v{t}, v{t}"); bf16r(A, t, t)
    A(f"v_rcp_f32 v{rs}, v{t}")


STAMP = False
WS_ST = 0x1000000
def stamp(A, idx):
    if STAMP: A(f"s_memrealtime s[{64+2*idx}:{65+2*idx}]")
def stamp_out(A, kid, n=6):
    if not STAMP: return
    A(f"s_memrealtime s[{64+2*(n-1)}:{65+2*(n-1)}]\ns_waitcnt lgkmcnt(0)")
    srd(A, 76, 14, 1<<20, WS_ST)
    A(f"s_add_u32 s45, s2, {kid*256}\ns_lshl_b32 s45, s45, 3\ns_add_u32 s45, s45, s42\ns_lshl_b32 s45, s45, 6\nv_mov_b32 v2, s45")
    A("s_mov_b64 exec, 1")
    for i in range(n): A(f"v_mov_b32 v3, s{64+2*i}\nbuffer_store_dword v3, v2, s[76:79], 0 offen offset:{4*i}")
    A("s_mov_b64 exec, -1")
def bulk(A, t):
    A(f"v_mul_u32_u24 v2, 4370, v{t}\nv_lshrrev_b32 v2, 16, v2\nv_mul_u32_u24 v3, 15, v2\nv_sub_u32 v3, v{t}, v3")
    A("v_mul_u32_u24 v4, 52, v3\nv_lshrrev_b32 v4, 8, v4\nv_mul_u32_u24 v4, 640, v4\nv_lshl_add_u32 v3, v3, 7, v4")
    A("s_mul_i32 s45, s41, 17\ns_add_u32 s46, s45, 128\nv_add_u32 v2, s46, v2\nv_mul_u32_u24 v2, 3840, v2\nv_add_u32 v2, v2, v3\ns_and_b32 s46, s40, 1\ns_mul_i32 s46, s46, 640\nv_add_u32 v2, s46, v2")
    A("buffer_load_dword v250, v2, s[20:23], 0 offen")
    return 1
def a_cons(A, kind):
    L = f"p0{kind}"
    A("s_lshl_b32 s60, s42, 12")
    A("v_and_b32 v2, 31, v1\nv_lshrrev_b32 v3, 5, v1\nv_lshrrev_b32 v4, 1, v2\nv_and_b32 v4, 7, v4")
    A("v_lshlrev_b32 v5, 7, v2\nv_add_u32 v5, s60, v5")
    A("v_bfe_u32 v6, v1, 2, 2\nv_lshl_add_u32 v6, v3, 3, v6\nv_mul_u32_u24 v6, 320, v6")
    A("v_bfe_u32 v7, v1, 4, 1\nv_lshlrev_b32 v7, 5, v7\nv_and_b32 v8, 3, v1\nv_lshl_add_u32 v7, v8, 3, v7\nv_add_u32 v6, v6, v7\nv_add_u32 v6, 16384, v6")
    for jj in range(4):
        A(f"s_add_u32 s45, s42, {jj}\ns_and_b32 s45, s45, 3\ns_lshl_b32 s46, s45, 1\ns_mul_i32 s45, s45, 5120")
        A(f"v_add_u32 v7, s46, v3\nv_xor_b32 v7, v7, v4\nv_lshl_add_u32 v{20+jj}, v7, 4, v5\nv_add_u32 v{24+jj}, s45, v6")
        A(f"v_mov_b32 v{28+jj}, v{20+jj}\nv_mov_b32 v{32+jj}, v{24+jj}")
    A("s_mov_b32 s55, 0x3f803f80\ns_mov_b32 s50, 0\ns_mov_b32 s54, 0")
    for r in list(range(96, 176)) + list(range(180, 200)): A(f"v_mov_b32 v{r}, 0")
    A("v_and_b32 v2, 15, v1\nv_bfe_u32 v3, v1, 4, 1\nv_cmp_eq_u32 vcc, v2, v3\nv_mov_b32 v4, s55")
    for r in range(4): A(f"v_cndmask_b32 v{44+r}, 0, v4, vcc")
    prods = [(0,2),(0,3),(1,3),(1,4),(2,4)]
    if kind == "kv":
        A("v_and_b32 v2, 31, v1\ns_mul_i32 s45, s42, 7168\ns_add_u32 s45, s45, "+str(XB)+"\nv_lshrrev_b32 v3, 5, v1\nv_lshlrev_b32 v3, 2, v3\nv_mov_b32 v8, s45\nv_add_u32 v8, 6912, v8\nv_lshl_add_u32 v244, v3, 2, s45")
        for et in (2,3,4):
            A(f"v_add_u32 v4, {32*et-80}, v2\nv_mul_i32_i24 v{8+et}, 80, v4\nv_add_u32 v{8+et}, s45, v{8+et}")
            A(f"v_mul_i32_i24 v5, 3277, v4\nv_ashrrev_i32 v5, 16, v5\nv_mul_i32_i24 v5, 20, v5\nv_sub_u32 v{12+et}, v3, v5")
        for pi,(dt,et) in enumerate(prods):
            for q in range(4):
                A(f"v_add_u32 v4, {32*dt+8*q}, v{12+et}\nv_cmp_gt_u32 vcc, 20, v4\nv_lshl_add_u32 v5, v4, 2, v{8+et}\nv_cndmask_b32 v{224+4*pi+q}, v8, v5, vcc")
    SET = [48, 72]
    def rlist(jj):
        b = SET[jj & 1]
        R = [f"ds_read_b128 {vr(b,4)}, v{28+jj}"]
        for n in range(5):
            for hh in range(2):
                R.append(f"ds_read_b64_tr_b16 {vr(b+4+4*n+2*hh,2)}, v{32+jj} offset:{hh*1280+n*64}")
        return R
    def reads(jj):
        for r in rlist(jj): A(r)
    A("s_waitcnt lgkmcnt(0)")
    srd(A, 24, 14, *( (SZ_KVP, WS_KVP) if kind == 'kv' else (SZ_X, WS_PQ)))
    stamp(A, 1)
    A("s_barrier")
    stamp(A, 2)
    reads(0)
    A(f"{L}_loop:")
    A(f"s_add_u32 s50, s50, 1\ns_add_u32 s54, s54, {P0_SLOT}\ns_cmp_ge_u32 s54, {NS0*P0_SLOT}\ns_cselect_b32 s54, 0, s54")
    for jj in range(4):
        b = SET[jj & 1]
        FINE = opt('fine', 1)
        P0R = ([4,4,3,0,0] if jj == 2 else [3,2,2,2,2]) if FINE else [3,3,3,2,0]
        if jj == 3 or not FINE: A("s_waitcnt lgkmcnt(0)")
        if jj == 3: A("s_barrier")
        R = rlist((jj+1) & 3)
        dots = ["", "", ""]

        j2 = {0: [0], 1: [1], 2: [2], 3: [3]}[jj]
        for j in j2: dots.append(f"v_add_u32 v{28+j}, s54, v{20+j}"); dots.append(f"v_add_u32 v{32+j}, s54, v{24+j}")
        per = (len(dots)+4)//5
        for n in range(5):
            acc = vr(96+16*n, 16)
            if FINE and jj < 3: A(f"s_waitcnt lgkmcnt({2*(4-n)+sum(P0R[:n])})")
            if STAMP and opt('nomf', 0) and n: pass
            elif kind == "kv": A(f"v_mfma_f32_32x32x16_bf16 {acc}, {vr(b,4)}, {vr(b+4+4*n,4)}, {acc}")
            else: A(f"v_mfma_f32_32x32x16_bf16 {acc}, {vr(b+4+4*n,4)}, {vr(b,4)}, {acc}")
            for _ in range(P0R[n]): A(R.pop(0))
            for d in dots[n*per:(n+1)*per]:
                if d: A(d)
            if jj == 0: A(f"v_mfma_f32_16x16x32_bf16 {vr(180+4*n,4)}, v[44:47], {vr(b+4+4*n,4)}, {vr(180+4*n,4)}")
    A(f"s_cmp_lt_u32 s50, 10\ns_cbranch_scc1 {L}_loop\ns_waitcnt lgkmcnt(0)\ns_nop 2")
    stamp(A, 3)
    A(f"v_lshlrev_b32 v2, 2, v1\ns_mul_i32 s45, s42, 768\nv_add_u32 v3, s45, v2\nv_add_u32 v3, {P0_X}, v3")
    A("s_mov_b64 exec, 0xffff")
    for n in range(5):
        src = 180+4*n
        A(f"ds_write2_b32 v3, v{src}, v{src+1} offset0:{32*n} offset1:{32*n+16}")
    A(f"s_mov_b64 exec, -1\nv_and_b32 v2, 31, v1\nv_lshlrev_b32 v2, 2, v2\nv_add_u32 v2, {P0_X}, v2\ns_lshl_b32 s45, s42, 8\nv_add_u32 v3, s45, v2\nds_read_b32 v37, v3 offset:3072\nds_read_b32 v39, v3 offset:3200")
    A("s_waitcnt vmcnt(0) lgkmcnt(0)\ns_barrier")
    for n in range(5):
        for w in range(4): A(f"ds_read_b32 v{48+4*n+w}, v2 offset:{w*768+n*128}")
    A("v_lshrrev_b32 v5, 16, v37\nv_or_b32 v72, v5, v37\nv_xor_b32 v72, 0x80008000, v72\nv_mov_b32 v73, 0\nv_mov_b32 v74, 0\nv_mov_b32 v75, 0")
    A("v_cmp_gt_u32 vcc, 32, v1")
    if kind == "kv":
        A(f"v_lshrrev_b32 v4, 5, v1\nv_lshlrev_b32 v4, 4, v4\nv_add_u32 v4, s45, v4\nv_add_u32 v4, {P0_X+3200}, v4")
        for q in range(4): A(f"ds_read_b128 {vr(176+4*q,4)}, v4 offset:{32*q}")
    A(f"s_waitcnt lgkmcnt({4 if kind == 'kv' else 0})")
    for n in range(5):
        b = 48+4*n
        A(f"v_add_f32 v{b}, v{b}, v{b+1}\nv_add_f32 v{b+2}, v{b+2}, v{b+3}\nv_add_f32 v{b}, v{b}, v{b+2}")
        bf16r(A, b+1, b)
        A(f"v_sub_f32 v{b+2}, v{b}, v{b+1}\nv_cvt_pk_bf16_f32 v{b}, v{b+1}, v{b+2}\nv_cndmask_b32 v{b}, 0, v{b}, vcc")
        A(f"v_mov_b32 v{b+1}, 0\nv_mov_b32 v{b+2}, 0\nv_mov_b32 v{b+3}, 0")
    for n in (range(4, -1, -1) if kind == "kv" else range(5)):
        acc = vr(96+16*n, 16)
        if kind == "kv": A(f"v_mfma_f32_32x32x16_bf16 {acc}, v[72:75], {vr(48+4*n,4)}, {acc}")
        else: A(f"v_mfma_f32_32x32x16_bf16 {acc}, {vr(48+4*n,4)}, v[72:75], {acc}")
    A(f"s_mov_b32 s62, {f2u(1e-6)}\nv_mov_b32 v8, s62\nv_mov_b32 v9, s62\nv_mov_b32 v10, {f2u(LOG2E)}\nv_mov_b32 v11, v10\nv_mov_b32 v38, v39")
    def phi4(r, rs, st, keep=False):
        P = lambda b: vr(b, 2)
        for h in (0, 2):
            if keep: A(f"v_pk_mul_f32 {P(12+h)}, {P(r+h)}, {P(rs+st*h)}")
            A(f"v_pk_fma_f32 {P(r+h)}, {P(r+h)}, {P(rs+st*h)}, v[8:9]")
        for h in (0, 2): A(f"v_pk_mul_f32 {P(4+h)}, {P(r+h)}, v[10:11]")
        for c in range(4): A(f"v_exp_f32 v{4+c}, v{4+c} clamp\nv_max_f32 v{r+c}, s62, v{r+c}")
        for h in (0, 2): A(f"v_pk_add_f32 {P(r+h)}, {P(r+h)}, {P(4+h)}")
        if keep:
            for c in range(4): A(f"v_cndmask_b32 v{r+c}, v{12+c}, v{r+c}, vcc")
    if kind == "q":
        A("s_lshl_b32 s45, s44, 7\ns_lshl_b32 s46, s43, 2\ns_add_u32 s45, s45, s46\ns_add_u32 s45, s45, s42\ns_mul_i32 s45, s45, 5120\nv_lshlrev_b32 v2, 4, v1\nv_add_u32 v3, 4096, v2")
        A(f"s_add_u32 s46, s45, {64*5120}")
        for n in range(5):
            for qq in range(2):
                a = 96+16*n+8*qq; o = 176+8*n+4*qq
                for r in (0, 4): phi4(a+r, 38, 0)
                for r in range(4): A(f"v_cvt_pk_bf16_f32 v{o+r}, v{a+2*r}, v{a+2*r+1}")
                A(f"v_permlane32_swap_b32 v{o}, v{o+2}\nv_permlane32_swap_b32 v{o+1}, v{o+3}")
                jj = 2*n+qq; A(f"buffer_store_dwordx4 {vr(o,4)}, v{3 if jj%5 == 4 else 2}, s[24:27], s{45+jj//5} offen offset:{1024*(jj%5&3)} sc1")
        stamp_out(A, 0)
        return
    A("s_waitcnt lgkmcnt(0)")
    A("v_and_b32 v2, 31, v1\nv_cmp_gt_u32 vcc, 16, v2")
    for r in range(4): A(f"v_mov_b32 v{88+r}, s55")
    def mm(acc, a, b0, b1): return [f"v_mfma_f32_32x32x16_bf16 {vr(acc,16)}, {vr(48+8*a,4)}, {vr(b0,4)}, 0", f"v_mfma_f32_32x32x16_bf16 {vr(acc,16)}, {vr(52+8*a,4)}, {vr(b1,4)}, {vr(acc,16)}"]
    pm = lambda pi: mm(96+16*pi, prods[pi][0], 48+8*prods[pi][1], 52+8*prods[pi][1])
    zm = lambda dt: mm(176+16*dt, dt, 88, 88)
    wr = lambda pi: [f"ds_write_b128 v{224+4*pi+q}, {vr(96+16*pi+4*q,4)}" for q in range(4)]
    il = lambda *L: [x for t in zip(*L) for x in t]
    Q = []
    for n in (4, 3, 2, 1, 0):
        for r in range(0, 16, 4):
            a = 96+16*n+r
            for _ in range(2 if n == 0 else 1):
                if Q: A(Q.pop(0))
            if n < 3: phi4(a, 176+r, 1, n == 2)
            else:
                for h in (0, 2): A(f"v_pk_mul_f32 {vr(a+h,2)}, {vr(a+h,2)}, {vr(176+r+h,2)}")
            for h in (0, 2): A(f"v_cvt_pk_bf16_f32 v{48+8*n+(r+h)//2}, v{a+h}, v{a+h+1}")
        assert not Q
        if n == 2: Q = il(pm(4), zm(2))
        if n == 1: Q = il(pm(2), pm(3), zm(1))
    W = wr(4)+wr(2)+wr(3)
    for m in il(pm(0), pm(1), zm(0)): A(m); A(W.pop(0)); A(W.pop(0))
    for w in wr(0)+wr(1): A(w)
    A("s_mov_b32 exec_lo, 1\ns_mov_b32 exec_hi, 1")
    for dt in range(3):
        for q in range(4):
            if 32*dt+8*q < 80: A(f"ds_write_b128 v244, {vr(176+16*dt+4*q,4)} offset:{6400+(32*dt+8*q)*4}")
    A("s_mov_b64 exec, -1\ns_waitcnt lgkmcnt(0)\ns_barrier")
    A(f"v_lshlrev_b32 v2, 4, v0\nv_add_u32 v6, {XB}, v2")
    for h in range(2):
        for w in range(4): A(f"ds_read_b128 {vr(48+16*h+4*w,4)}, v6 offset:{w*7168+h*4096}")
    A("s_lshl_b32 s45, s43, 3\ns_add_u32 s45, s45, s44\ns_mul_i32 s45, s45, 6720\nv_add_u32 v3, s45, v2")
    A(f"v_add_u32 v4, 4096, v3\nv_mov_b32 v5, {OOB}\nv_cmp_gt_u32 vcc, 164, v0\nv_cndmask_b32 v4, v5, v4, vcc")
    A("s_waitcnt lgkmcnt(0)")
    for h in range(2):
        b = 48+16*h
        for r in range(4): A(f"v_add_f32 v{b+r}, v{b+r}, v{b+4+r}\nv_add_f32 v{b+8+r}, v{b+8+r}, v{b+12+r}\nv_add_f32 v{b+r}, v{b+r}, v{b+8+r}")
        A(f"buffer_store_dwordx4 {vr(b,4)}, v{3+h}, s[24:27], 0 offen sc1")
    stamp_out(A, 0)

IM = opt('im', 0); LAT = opt('lat', 0); AH = opt('ah', 256)
def aux_job(A):
    HP = 1312
    A("s_lshl_b32 s45, s43, 5\ns_lshl_b32 s46, s42, 2\ns_add_u32 s45, s45, s46")
    A("v_lshrrev_b32 v2, 4, v1\nv_add_u32 v3, s45, v2\nv_mul_u32_u24 v3, 1280, v3\nv_and_b32 v4, 15, v1\nv_lshl_add_u32 v3, v4, 4, v3\ns_waitcnt lgkmcnt(0)")
    srd(A, 16, 4, SZ_X)
    for i in range(5): A(f"buffer_load_dwordx4 {vr(16+4*i,4)}, v3, s[16:19], 0 offen offset:{256*i}")
    if opt('px', 0): A(f"s_xor_b32 s48, s43, 8\ns_mul_i32 s48, s48, 40960\nv_lshlrev_b32 v5, 7, v0\nv_mov_b32 v7, {OOB}\nv_cmp_gt_u32 vcc, 320, v0\nv_cndmask_b32 v5, v7, v5, vcc\nbuffer_load_dword v241, v5, s[16:19], s48 offen")
    srd(A, 24, 14, SZ_X+16384, WS_HT)
    if not LAT & 1:
        srd(A, 28, 12, SZ_WO)
        A("s_mul_i32 s48, s96, 102400\ns_mul_i32 s50, s97, 160\ns_add_u32 s48, s48, s50")
        for i in range(2):
            A(f"v_add_u32 v5, {512*i}, v0\nv_mul_u32_u24 v6, 6554, v5\nv_lshrrev_b32 v6, 16, v6\nv_mul_u32_u24 v6, 1120, v6\nv_lshl_add_u32 v6, v5, 4, v6")
            if i: A(f"v_mov_b32 v7, {OOB}\nv_cmp_gt_u32 vcc, 800, v5\nv_cndmask_b32 v6, v7, v6, vcc")
            A(f"s_lshl_b32 s50, s42, 10\ns_add_u32 m0, s50, {XB+20480+8192*i}\nbuffer_load_dwordx4 v6, s[28:31], s48 offen lds")
    if not LAT & 2:
        srd(A, 36, 84, SZ_W1)
        A(f"s_and_b32 s50, s41, 3\ns_mul_i32 s50, s50, {AH}\nv_add_u32 v5, s50, v0\nv_mul_u32_u24 v5, 3456, v5\nv_mov_b32 v7, {OOB}\nv_cmp_gt_u32 vcc, {AH}, v0\nv_cndmask_b32 v5, v7, v5, vcc\ns_lshl_b32 s50, s96, 7\nbuffer_load_dword v240, v5, s[36:39], s50 offen")
    A("s_mov_b32 s55, 0x3f803f80")
    A(f"v_add_u32 v5, s46, v2\nv_mul_u32_u24 v5, {HP}, v5\nv_lshl_add_u32 v5, v4, 4, v5")
    A(f"v_bfe_u32 v3, v1, 2, 2\nv_and_b32 v6, 3, v1\nv_lshl_add_u32 v7, v2, 3, v3\nv_mul_u32_u24 v7, {HP}, v7\nv_lshl_add_u32 v7, v6, 3, v7\ns_lshl_b32 s50, s42, 5\nv_add_u32 v7, s50, v7")
    A("v_lshlrev_b32 v40, 6, v4\nv_lshl_add_u32 v40, v2, 4, v40\ns_mul_i32 s50, s43, 40960\ns_lshl_b32 s51, s42, 10\ns_add_u32 s50, s50, s51")
    def red(r):
        for m in ("quad_perm:[1,0,3,2]", "quad_perm:[2,3,0,1]", "row_half_mirror", "row_mirror"):
            for q in r: A(f"v_add_f32_dpp v{q}, v{q}, v{q} {m} row_mask:0xf bank_mask:0xf")
    A(f"s_waitcnt vmcnt({opt('px', 0)+[3,1,2,0][LAT]})")
    stamp(A, 2)
    for ln in range(2):
        for r in range(8, 12): A(f"v_mov_b32 v{r}, 0")
        for r in range(20):
            A(f"v_dot2c_f32_bf16 v{8+(r&1)}, s55, v{16+r}\nv_dot2c_f32_bf16 v{10+(r&1)}, v{16+r}, v{16+r}")
        A("v_add_f32 v8, v8, v9\nv_add_f32 v10, v10, v11")
        red((8, 10))
        ln_scalars(A, 8, 10, 14, 12, 9)
        if ln == 0: A("v_add_u32 v9, s46, v2\nv_lshlrev_b32 v9, 2, v9\nv_add_u32 v9, 42240, v9\nds_write2_b32 v9, v14, v12 offset1:32")
        A("v_mul_f32 v14, v14, v12\nv_sub_f32 v14, 0, v14\nv_mov_b32 v13, v12\nv_mov_b32 v15, v14")
        for r in range(20):
            t = 60+2*(r&7)
            A(f"v_lshlrev_b32 v{t}, 16, v{16+r}\nv_and_b32 v{t+1}, 0xffff0000, v{16+r}")
            A(f"v_pk_fma_f32 {vr(t,2)}, {vr(t,2)}, v[12:13], v[14:15]\nv_cvt_pk_bf16_f32 v{16+r}, v{t}, v{t+1}")
    for i in range(5): A(f"ds_write_b128 v5, {vr(16+4*i,4)} offset:{256*i}")
    stamp(A, 3)
    A("s_waitcnt lgkmcnt(0)\ns_barrier")
    A(f"s_cmp_lg_u32 s42, 3\ns_cbranch_scc1 ax_ns\nv_lshlrev_b32 v9, 2, v1\nds_read_b32 v8, v9 offset:42240\ns_lshl_b32 s51, s43, 8\ns_add_u32 s51, s51, {SZ_X}\ns_waitcnt lgkmcnt(0)\nbuffer_store_dword v8, v9, s[24:27], s51 offen sc1\nax_ns:")
    for i in range(5):
        for hh in range(2): A(f"ds_read_b64_tr_b16 {vr(16+4*i+2*hh,2)}, v7 offset:{256*i+hh*4*HP}")
    for i in range(5):
        A(f"s_waitcnt lgkmcnt({8-2*i})\nbuffer_store_dwordx4 {vr(16+4*i,4)}, v40, s[24:27], s50 offen sc1\ns_add_u32 s50, s50, 8192")
def aux_wo(A):
    srd(A, 36, 14, SZ_UW, WS_UW)
    A(f"v_and_b32 v6, 3, v1\nv_and_b32 v4, 15, v1\nv_lshrrev_b32 v2, 4, v1\nv_bfe_u32 v3, v1, 2, 2\nv_lshl_add_u32 v8, v2, 3, v3\nv_mul_u32_u24 v8, 160, v8\nv_lshl_add_u32 v8, v6, 3, v8\nv_add_u32 v8, {XB+20480}, v8")
    A("v_mul_u32_u24 v9, 4736, v4\nv_lshl_add_u32 v9, v2, 4, v9\ns_mul_i32 s49, s97, 378880\ns_mul_i32 s44, s96, 160\ns_add_u32 s49, s49, s44\ns_add_u32 s49, s49, 3456\nv_add_u32 v9, s49, v9")
    A(f"v_mov_b32 v11, {OOB}")
    for m in range(4):
        A(f"s_add_u32 s44, s42, {4*m}\ns_min_u32 s44, s44, 14\ns_mul_i32 s51, s44, 86\ns_lshr_b32 s51, s51, 8\ns_mul_i32 s52, s51, 3\ns_sub_u32 s52, s44, s52")
        A(f"s_mul_i32 s53, s52, 5120\ns_lshl_b32 s47, s51, 5\ns_add_u32 s53, s53, s47\nv_add_u32 v10, s53, v8\nds_read_b64_tr_b16 {vr(60+4*m,2)}, v10\nds_read_b64_tr_b16 {vr(62+4*m,2)}, v10 offset:640")
        A(f"s_mul_i32 s53, s51, {16*4736}\ns_lshl_b32 s47, s52, 6\ns_add_u32 s53, s53, s47\nv_add_u32 v{50+m}, s53, v9\ns_cmp_eq_u32 s52, 2\ns_cselect_b32 s47, 32, 64\nv_cmp_gt_u32 vcc, s47, v1\nv_cndmask_b32 v{50+m}, v11, v{50+m}, vcc")
    A("s_waitcnt lgkmcnt(0)")
    for m in range(4): A(f"buffer_store_dwordx4 {vr(60+4*m,4)}, v{50+m}, s[36:39], 0 offen sc1")

def core_cons(A, L, NK, t_is_A, slot0, pub, mid):
    NS = (NK+1)//2
    stamp(A, 0)
    A(f"s_and_b32 s45, s42, 1\ns_lshl_b32 s45, s45, 1\ns_lshr_b32 s46, s42, 1\ns_or_b32 s45, s45, s46\ns_mul_i32 s46, s46, {SUB}")
    A("v_lshrrev_b32 v2, 4, v1\nv_bfe_u32 v3, v1, 2, 2\nv_and_b32 v4, 3, v1\nv_lshl_add_u32 v5, v2, 3, v3\nv_lshlrev_b32 v5, 7, v5\nv_lshl_add_u32 v5, v4, 3, v5\nv_add_u32 v5, s46, v5")
    A("v_lshrrev_b32 v6, 1, v3\nv_and_b32 v7, 1, v2\nv_lshl_or_b32 v6, v7, 1, v6\nv_xor_b32 v6, s45, v6\nv_lshl_add_u32 v20, v6, 5, v5\nv_xor_b32 v6, 1, v6\nv_lshl_add_u32 v21, v6, 5, v5")
    A("s_add_u32 s46, s46, 8192\nv_and_b32 v3, 15, v1\nv_lshrrev_b32 v4, 1, v3\nv_xor_b32 v4, v4, v2\nv_lshlrev_b32 v5, 7, v3\nv_add_u32 v5, s46, v5\nv_lshl_add_u32 v22, v4, 4, v5\nv_xor_b32 v4, 4, v4\nv_lshl_add_u32 v23, v4, 4, v5")
    for r in range(96, 136): A(f"v_mov_b32 v{r}, 0")
    SET = [136, 192]
    def readlist(p):
        b = SET[p]; R = []
        for ks in range(2):
            for tt in range(2):
                for hh in range(2): R.append(f"ds_read_b64_tr_b16 {vr(b+8*ks+4*tt+2*hh,2)}, v{24+tt} offset:{ks*4096+hh*512}")
            for rt in range(5): R.append(f"ds_read_b128 {vr(b+16+20*ks+4*rt,4)}, v{26+ks} offset:{2048*rt}")
        return R
    def radv():
        for j in range(4): A(f"v_add_u32 v{24+j}, s54, v{20+j}")
        A(f"s_add_u32 s54, s54, {CSLOT}\ns_cmp_ge_u32 s54, s48\ns_cselect_b32 s54, 0, s54")
    A(f"s_mov_b32 s54, {slot0*CSLOT}\ns_mov_b32 s50, 0\ns_mov_b32 s48, {3*CSLOT}")
    if t_is_A and opt('r4', 1): A(f"s_cmp_eq_u32 s98, 3\ns_cselect_b32 s48, {4*CSLOT}, s48")
    radv()
    stamp(A, 1)
    if pub and not opt('od', 1):
        A(f"s_cmp_lg_u32 s98, 1\ns_cbranch_scc1 {L}_no\ns_waitcnt vmcnt(0)"); atom(A, None, 58, 59); A(f"s_mov_b32 s59, 0\n{L}_no:")
    publish(A, L)
    mid()
    if pub: pub()
    stamp(A, 4)
    A("s_barrier\ns_barrier")
    stamp(A, 2)
    for r in readlist(0): A(r)
    radv()
    def body(p):
        b = SET[p]
        if pub and p: A(f"s_cmp_eq_u32 s50, s60\ns_cbranch_scc1 {L}_def\n{L}d_np:")
        A(f"s_waitcnt lgkmcnt(0)\ns_barrier")
        R = readlist(1-p); i = 0
        for ks in range(2):
            for rt in range(5):
                for tt in range(2):
                    acc = vr(96+20*tt+4*rt, 4); T = vr(b+8*ks+4*tt, 4); K = vr(b+16+20*ks+4*rt, 4)
                    if t_is_A: A(f"v_mfma_f32_16x16x32_bf16 {acc}, {T}, {K}, {acc}")
                    else: A(f"v_mfma_f32_16x16x32_bf16 {acc}, {K}, {T}, {acc}")
                    for _ in range(RPM[i]):
                        if R: A(R.pop(0))
                    if i == 16: radv()
                    i += 1
        assert not R
        A("s_add_u32 s50, s50, 1")
    A(f"{L}_loop:")
    body(0)
    A(f"s_cmp_ge_u32 s50, {NS}\ns_cbranch_scc1 {L}_done")
    body(1)
    A(f"s_cmp_lt_u32 s50, {NS}\ns_cbranch_scc1 {L}_loop")
    A(f"{L}_done:\ns_waitcnt vmcnt(0) lgkmcnt(0)")
    stamp(A, 3)
    A(f"v_lshlrev_b32 v2, 4, v1\nv_add_u32 v2, {XB}, v2\ns_mul_i32 s45, s42, 5120\nv_add_u32 v3, s45, v2\ns_xor_b32 s46, s42, 2\ns_mul_i32 s46, s46, 5120\nv_add_u32 v4, s46, v2")
    for rt in range(5): A(f"ds_write_b128 v3, {vr(116+4*rt,4)} offset:{1024*rt}")
    A("s_waitcnt lgkmcnt(0)\ns_barrier")
    for rt in range(5): A(f"ds_read_b128 {vr(136+4*rt,4)}, v4 offset:{1024*rt}")
    A("s_waitcnt lgkmcnt(0)")
    for r in range(20): A(f"v_add_f32 v{96+r}, v{96+r}, v{136+r}")
RPM = [2,1,2,1,2,1,2,1,2,1,2,1,0,0,0,0,0,0,0,0]

def o_cons(A):
    PO = 176; OB = XB+4096
    A("s_lshl_b32 s45, s43, 4\ns_lshl_b32 s46, s44, 2\ns_add_u32 s45, s45, s46\ns_add_u32 s45, s45, s42\ns_mul_i32 s45, s45, 20480\nv_lshlrev_b32 v7, 4, v1")
    for i in range(20):
        A(f"buffer_load_dwordx4 {vr(16+4*i,4)}, v7, s[20:23], s45 offen offset:{1024*(i&3)} sc1")
        if i & 3 == 3: A("s_add_u32 s45, s45, 4096")
    A("v_and_b32 v6, 31, v1\nv_lshrrev_b32 v8, 5, v1\nv_lshlrev_b32 v9, 3, v8\nv_mov_b32 v5, "+str(XB+3584))
    for et in range(3):
        A(f"v_add_u32 v2, {32*et}, v6\nv_mul_u32_u24 v{10+et}, 40, v2\nv_add_u32 v{10+et}, {XB}, v{10+et}\nv_mul_u32_u24 v3, 3277, v2\nv_lshrrev_b32 v3, 16, v3\nv_mul_u32_u24 v3, 20, v3\nv_sub_u32 v{13+et}, v9, v3")
    A("v_and_b32 v2, 3, v1\nv_bfe_u32 v3, v1, 3, 2\nv_lshl_add_u32 v2, v3, 2, v2\nv_and_b32 v3, 4, v1\nv_lshl_add_u32 v2, v2, 3, v3\nv_mul_u32_u24 v3, 3277, v2\nv_lshrrev_b32 v3, 16, v3\nv_mul_u32_u24 v3, 20, v3\nv_sub_u32 v252, v9, v3")
    steps = [(0,0),(0,1),(0,2),(1,1),(1,2),(1,3),(1,4),(2,3),(2,4)]
    AD = 224
    for i,(et,j) in enumerate(steps):
        for hq in range(2):
            A(f"v_add_u32 v2, {16*j+4*hq}, v{13+et}\nv_lshl_add_u32 v3, v2, 1, v{10+et}\nv_cmp_gt_u32 vcc, 20, v2\nv_cndmask_b32 v{AD+2*i+hq}, v5, v3, vcc")
    for j in range(5):
        for hq in range(2):
            dq = 16*j+4*hq
            A(f"v_add_u32 v2, {dq}, v252\nv_lshlrev_b32 v3, 1, v9\nv_add_u32 v3, {XB+3200+2*dq}, v3\nv_cmp_gt_u32 vcc, 20, v2\nv_cndmask_b32 v{AD+18+2*j+hq}, v5, v3, vcc")
    A("v_mov_b32 v96, 0"); poll_check(A, "cO2", "s60", 0x1010, 8, "s42", 96); A("s_barrier")
    A("s_mul_i32 s45, s43, 6720\nv_lshlrev_b32 v2, 4, v0\nv_add_u32 v3, s45, v2")
    A(f"v_add_u32 v4, 4096, v3\nv_mov_b32 v5, {OOB}\nv_cmp_gt_u32 vcc, 164, v0\nv_cndmask_b32 v4, v5, v4, vcc\ns_mov_b32 s46, 0")
    for i in range(16):
        A(f"buffer_load_dwordx4 {vr(96+8*i,4)}, v3, s[16:19], s46 offen sc1\nbuffer_load_dwordx4 {vr(100+8*i,4)}, v4, s[16:19], s46 offen sc1\ns_add_u32 s46, s46, {8*6720}")
    stamp(A, 1)
    for i in range(1, 16):
        A(f"s_waitcnt vmcnt({2*(15-i)})")
        for r in range(4): A(f"v_pk_add_f32 {vr(96+2*r,2)}, {vr(96+2*r,2)}, {vr(96+8*i+2*r,2)}")
    stamp(A, 2)
    for r in range(4): A(f"v_cvt_pk_bf16_f32 v{104+r}, v{96+2*r}, v{96+2*r+1}")
    A(f"v_lshlrev_b32 v2, 3, v0\nv_add_u32 v2, {XB}, v2\nds_write_b64 v2, v[104:105]\nds_write_b64 v2, v[106:107] offset:2048")
    A("s_waitcnt lgkmcnt(0)\ns_barrier")
    for i in range(28): A(f"ds_read_b64 {vr(96+2*i,2)}, v{AD+i}")
    for r in range(16): A(f"v_mov_b32 v{152+r}, {f2u(1e-6)}")
    A(f"s_mul_i32 s45, s42, {64*PO}\ns_add_u32 s45, s45, {OB}\nv_mul_u32_u24 v2, {PO}, v6\nv_add_u32 v2, s45, v2\nv_add_u32 v2, v2, v9")
    A(f"v_lshrrev_b32 v3, 4, v1\nv_bfe_u32 v4, v1, 1, 1\nv_lshl_add_u32 v3, v3, 1, v4\nv_bfe_u32 v4, v1, 2, 2\nv_lshl_add_u32 v5, v3, 3, v4\nv_mul_u32_u24 v5, {PO}, v5\nv_and_b32 v4, 1, v1\nv_lshl_add_u32 v5, v4, 3, v5\nv_add_u32 v5, s45, v5")
    A("s_mul_i32 s46, s43, 80\nv_and_b32 v7, 7, v1\nv_add_u32 v7, s46, v7\nv_lshlrev_b32 v7, 12, v7\nv_lshrrev_b32 v3, 3, v1\nv_lshl_add_u32 v7, v3, 4, v7\ns_lshl_b32 s46, s44, 10\ns_lshl_b32 s47, s42, 8\ns_add_u32 s46, s46, s47\nv_add_u32 v7, s46, v7")
    A("s_waitcnt vmcnt(0) lgkmcnt(0)")
    stamp(A, 3)
    N = [168, 184, 200]; D = 216
    def fin(b, et):
        R = 232+10*(b&1); W = []
        for q in range(4 if et < 2 else 2):
            n = N[et]+4*q
            W += [f"v_mul_f32 v{n+c}, v{n+c}, v{R+4*et+q}" for c in range(4)]
            W += [f"v_cvt_pk_bf16_f32 v{n}, v{n}, v{n+1}", f"v_cvt_pk_bf16_f32 v{n+1}, v{n+2}, v{n+3}", f"ds_write_b64 v2, {vr(n,2)} offset:{32*(b&1)*PO+64*et+16*q}"]
        return W
    def trr(h): return [f"ds_read_b64_tr_b16 {vr(16+40*h+4*i+2*hh,2)}, v5 offset:{4*hh*PO+16*i}" for i in range(10) for hh in range(2)]
    def sto(h):
        W = []
        for i in range(10): W += [f"s_mov_b32 s46, {32768*i}", f"buffer_store_dwordx4 {vr(16+40*h+4*i,4)}, v7, s[24:27], s46 offen offset:{128*h} sc1"]
        return W
    def emit(M, F, skip):
        per = -(-len(F)//max(1, len(M)-skip))
        for i, m in enumerate(M):
            A(m)
            if i >= skip:
                for f in F[(i-skip)*per:(i-skip+1)*per]: A(f)
    for b in range(4):
        pq = lambda j: vr(16+20*b+4*j, 4)
        emit([f"v_mfma_f32_32x32x16_bf16 {vr(D,16)}, {vr(132+4*j,4)}, {pq(j)}, {vr(D,16) if j else vr(152,16)}" for j in range(5)], fin(b-1,1)+fin(b-1,2) if b else [], 0)
        M = []
        for i,(et,j) in enumerate(steps):
            first = i == 0 or steps[i-1][0] != et
            M.append(f"v_mfma_f32_32x32x16_bf16 {vr(N[et],16)}, {vr(96+4*i,4)}, {pq(j)}, {'0' if first else vr(N[et],16)}")
        rc = [f"v_rcp_f32 v{232+10*(b&1)+r}, v{D+r}" for r in range(10)]
        emit(M[:4], (["s_waitcnt lgkmcnt(0)"]+trr(0) if b == 2 else []) + rc, 0 if b == 2 else 1)
        if b == 2: A("s_waitcnt lgkmcnt(0)")
        emit(M[4:], fin(b, 0) + (sto(0)[:10] if b == 2 else sto(0)[10:] if b == 3 else []), 0)
    for f in fin(3,1)+fin(3,2)+["s_waitcnt lgkmcnt(0)"]+trr(1)+["s_waitcnt lgkmcnt(0)"]+sto(1): A(f)
    stamp_out(A, 1)

class Stream:
    def __init__(s, A, items, adv, prep): s.A, s.items, s.adv, s.prep = A, items, adv, prep
    def issue(s, first=False, nsl=3):
        A = s.A
        for i, (v, sd, so, base, lo, mod) in enumerate(s.items):
            if first: s.prep(i)
            A(f"s_add_u32 m0, s{base}, {lo}\nbuffer_load_dwordx4 v{v}, {sr(sd)}, s{so} offen {mod}lds")
        A("s_add_u32 s58, s58, 1"); s.adv()
        A(f"s_add_u32 s59, s59, {CSLOT}\ns_cmp_ge_u32 s59, {nsl*CSLOT}\ns_cselect_b32 s59, 0, s59\ns_add_u32 s53, s59, s60\ns_add_u32 s57, s59, s61")
WS_Z = 0xF00000; ZS = 256
def poll_issue(A, L, off, sd=8, w="s49"):
    A(f"s_cmp_lg_u32 {w}, 0\ns_cbranch_scc1 {L}_pi\nbuffer_load_dword v34, off, {sr(sd)}, {off} sc1\n{L}_pi:")
def poll_check(A, L, off, tgt, sd=8, w="s49", v=34):
    A(f"s_cmp_lg_u32 {w}, 0\ns_cbranch_scc1 {L}_ok\ns_mov_b32 s63, 0x40000\n{L}_chk:\nv_readfirstlane_b32 s55, v{v}\ns_nop 1\ns_cmp_ge_u32 s55, {tgt}\ns_cbranch_scc1 {L}_ok")
    A(f"s_sub_u32 s63, s63, 1\ns_cbranch_scc1 {L}_ok\nbuffer_load_dword v{v}, off, {sr(sd)}, {off} sc1\ns_waitcnt vmcnt(0)\ns_branch {L}_chk\n{L}_ok:")
def a_stream(A, kind):
    A("s_lshl_b32 s45, s43, 7\ns_lshl_b32 s46, s49, 5\ns_add_u32 s45, s45, s46\ns_mul_i32 s51, s45, 1280\ns_mov_b32 s52, s47")
    A("v_lshrrev_b32 v2, 3, v1\nv_mul_u32_u24 v2, 1280, v2\nv_lshrrev_b32 v3, 4, v1\nv_and_b32 v4, 7, v1\nv_xor_b32 v3, v3, v4\nv_lshl_add_u32 v10, v3, 4, v2")
    A("s_lshl_b32 s60, s49, 12\ns_mul_i32 s61, s49, 5120\ns_add_u32 s61, s61, 16384\ns_mul_i32 s46, s49, 320")
    A("s_mov_b32 s58, 0\ns_mov_b32 s59, 0\ns_mov_b32 s53, s60\ns_mov_b32 s57, s61")
    def prep(i):
        if i == 0: A("s_waitcnt lgkmcnt(0)"); srd(A, 16, 4, SZ_X); stamp(A, 1)
        if i == 1: A(f"v_xor_b32 v11, 64, v10\nv_add_u32 v11, {8*1280}, v11")
        if i in (2, 3): A(f"v_add_u32 v{10+i}, {16*1280}, v{8+i}")
        if i == 4:
            srd(A, 20, 6, SZ_WQKV)
            A(f"s_movk_i32 s62, {1280 if kind == 'kv' else 3520}\ns_movk_i32 s63, 1120\nv_add_u32 v5, s46, v1")
        if i >= 4:
            if i > 4: A("v_add_u32 v5, 64, v5")
            if kind == "kv":
                A(f"v_mul_u32_u24 v6, 6554, v5\nv_lshlrev_b32 v7, 4, v5\nv_lshrrev_b32 v8, 16, v6\nv_lshrrev_b32 v6, 17, v6\nv_mad_u32_u24 v7, v8, s63, v7\nv_mad_u32_u24 v{10+i}, v6, s62, v7")
            else:
                A(f"v_mul_u32_u24 v6, 3277, v5\nv_lshlrev_b32 v7, 4, v5\nv_lshrrev_b32 v6, 16, v6\nv_mad_u32_u24 v{10+i}, v6, s62, v7")
    items = [(10+m, 16, 51, 53, m*1024, "") for m in range(4)] + [(14+m, 20, 52, 57, m*1024, "") for m in range(5)]
    if STAMP and opt('now', 0): items = items[:4] + [(10+m%4, 16, 51, 57, m*1024, "") for m in range(5)]
    return Stream(A, items, lambda: A(f"s_add_u32 s51, s51, 128\ns_add_u32 s52, s52, {64*3840}"), prep)
def g_stream(A, job):
    tp, kp, ks = (3456, 64, 81920) if job == "B" else (4096, 4736, 128)
    def setup():
        if job == "B":
            srd(A, 16, 84, SZ_W1); srd(A, 20, 14, SZ_X, WS_HT)
            A(f"s_lshl_b32 s47, s96, 7\ns_mul_i32 s48, s97, {80*64}")
        else:
            srd(A, 16, 88, SZ_W2); srd(A, 20, 14, SZ_UW, WS_UW); srd(A, 36, 14, SZ_X, WS_OT)
            A(f"s_lshl_b32 s47, s40, 2\ns_and_b32 s45, s41, 3\ns_add_u32 s47, s47, s45\ns_lshl_b32 s47, s47, 7\ns_lshr_b32 s48, s41, 2\ns_mul_i32 s48, s48, {80*4736}")
        A(f"s_and_b32 s45, s49, 1\ns_lshr_b32 s56, s49, 1\ns_mul_i32 s46, s45, {32*tp}\ns_add_u32 s47, s47, s46\ns_mul_i32 s46, s45, {40*kp}\ns_add_u32 s48, s48, s46")
        A(f"s_mul_i32 s60, s56, {SUB}\ns_mul_i32 s46, s45, 5120\ns_add_u32 s61, s60, s46\ns_add_u32 s61, s61, 8192\ns_lshl_b32 s46, s45, 12\ns_add_u32 s60, s60, s46\ns_lshl_b32 s45, s45, 2")
        A(f"s_mul_i32 s51, s56, {64*tp}\ns_mul_i32 s52, s56, {ks}\ns_mov_b32 s58, 0\ns_add_u32 s53, s59, s60\ns_add_u32 s57, s59, s61")
        A("v_lshrrev_b32 v2, 3, v1\nv_and_b32 v4, 7, v1\nv_bfe_u32 v3, v1, 4, 1\nv_lshlrev_b32 v3, 1, v3")
        A(f"v_mul_u32_u24 v5, {tp}, v2\nv_add_u32 v5, s47, v5\nv_xor_b32 v6, v3, v4\nv_lshl_add_u32 v10, v6, 4, v5\nv_xor_b32 v6, 4, v6\nv_lshl_add_u32 v11, v6, 4, v5\nv_add_u32 v11, {8*tp}, v11")
        A(f"v_add_u32 v12, {16*tp}, v10\nv_add_u32 v13, {16*tp}, v11")
        A(f"v_lshrrev_b32 v3, 4, v1\nv_xor_b32 v3, v3, v4\nv_xor_b32 v3, s45, v3\nv_mul_u32_u24 v7, {kp}, v2\nv_add_u32 v7, s48, v7\nv_lshl_add_u32 v14, v3, 4, v7\nv_xor_b32 v3, 4, v3\nv_lshl_add_u32 v15, v3, 4, v7\nv_add_u32 v15, {8*kp}, v15")
        if job == "B": A(f"v_lshrrev_b32 v3, 2, v3\nv_mul_u32_u24 v8, {40960-64}, v3\nv_add_u32 v15, v15, v8\nv_xor_b32 v3, 1, v3\nv_mul_u32_u24 v8, {40960-64}, v3\nv_add_u32 v14, v14, v8")
        for m in range(2, 5): A(f"v_add_u32 v{14+m}, {16*kp}, v{12+m}")
    def adv():
        A(f"s_add_u32 s51, s51, {128*tp}\ns_add_u32 s52, s52, {2*ks}\ns_add_u32 s56, s56, 2")
        if job == "C":
            A(f"s_sub_u32 s45, s56, 27\ns_mul_i32 s46, s45, {64*tp}\ns_cmp_lt_u32 s45, 2\ns_cselect_b32 s16, s36, s16\ns_cselect_b32 s17, s37, s17\ns_cselect_b32 s18, s38, s18\ns_cselect_b32 s51, s46, s51")
            A(f"s_cmp_ge_u32 s56, 37\ns_cselect_b32 s52, {OOB}, s52")
    items = []
    for m in range(5):
        if m < 4: items.append((10+m, 16, 51, 53, m*1024, "sc1 " if job == "C" else ""))
        items.append((14+m, 20, 52, 57, m*1024, "sc1 "))
    st = Stream(A, items, adv, None); st.setup = setup
    return st
def pf_w1(A):
    srd(A, 24, 84, SZ_W1)
    A(f"s_and_b32 s45, s41, 3\ns_lshl_b32 s45, s45, 9\ns_sub_u32 s45, s45, 256\nv_add_u32 v2, s45, v0\nv_mul_u32_u24 v2, 3456, v2\ns_lshl_b32 s45, s96, 7\nv_add_u32 v2, s45, v2\ns_mov_b32 s45, {256*3456}")
    A("buffer_load_dword v240, v2, s[24:27], 0 offen\nbuffer_load_dword v241, v2, s[24:27], s45 offen")
    return 2
def pf_w1h(A, h, r0=None, n=208):
    srd(A, 24, 84, SZ_W1)
    A(f"s_and_b32 s45, s41, 3\ns_mul_i32 s45, s45, {n}\ns_add_u32 s45, s45, {(r0 or 384+832*h)-256}\nv_add_u32 v2, s45, v0\nv_mul_u32_u24 v2, 3456, v2\ns_lshl_b32 s45, s96, 7")
    A(f"v_mov_b32 v4, {OOB}\nv_cmp_gt_u32 vcc, {256+n}, v0\nv_cndmask_b32 v2, v4, v2, vcc\nbuffer_load_dword v{240+h}, v2, s[24:27], s45 offen")
def pf_w2(A, thr=256+216):
    srd(A, 24, 88, SZ_W2)
    A("s_lshr_b32 s45, s41, 2\ns_mul_i32 s45, s45, 216\ns_sub_u32 s45, s45, 256\nv_add_u32 v2, s45, v0\nv_lshlrev_b32 v2, 12, v2\ns_lshl_b32 s45, s40, 2\ns_and_b32 s46, s41, 3\ns_add_u32 s45, s45, s46\ns_lshl_b32 s45, s45, 7\nv_add_u32 v2, s45, v2")
    A(f"v_mov_b32 v4, {OOB}\nv_cmp_gt_u32 vcc, {thr}, v0\nv_cndmask_b32 v2, v4, v2, vcc\nbuffer_load_dword v242, v2, s[24:27], 0 offen")
    return 1
def pf_w2r(A, nr):
    srd(A, 24, 88, SZ_W2)
    A("s_sub_u32 s45, s35, 256\nv_add_u32 v2, s45, v0\nv_lshlrev_b32 v2, 12, v2\ns_lshl_b32 s45, s40, 2\ns_and_b32 s46, s41, 3\ns_add_u32 s45, s45, s46\ns_lshl_b32 s45, s45, 7")
    for j in range((nr+255)//256):
        if nr < 256*j+256: A(f"v_mov_b32 v4, {OOB}\nv_cmp_gt_u32 vcc, {256+nr-256*j}, v0\nv_cndmask_b32 v2, v4, v2, vcc")
        A(f"buffer_load_dword v{242+j}, v2, s[24:27], s45 offen\ns_add_u32 s45, s45, {256*4096}")
def masks(A):
    srd(A, 8, 14, 256*ZS, WS_Z); srd(A, 24, 94, 256)
    A(f"s_and_b32 s28, s40, 1\ns_lshl_b32 s28, s28, 7\ns_mul_i32 s29, s40, {ZS}\ns_lshr_b32 s30, s41, 2\ns_mul_i32 s30, s30, {8*ZS}\ns_add_u32 s30, s30, s29\ns_add_u32 s30, s30, {40*ZS}\ns_add_u32 s31, s30, {64*ZS}\ns_add_u32 s32, s30, {128*ZS}\ns_add_u32 s33, s29, {232*ZS}")
def stat_ld(A):
    srd(A, 24, 14, 16384, WS_HT+SZ_X)
    A(f"s_lshl_b32 s45, s49, 8\ns_add_u32 m0, s45, {P0_X+3072}\ns_lshl_b32 s46, s43, 10\ns_add_u32 s45, s45, s46\nv_lshlrev_b32 v9, 2, v1\nbuffer_load_dword v9, s[24:27], s45 offen sc1 lds")
def wo_ld(A):
    srd(A, 24, 12, SZ_WO)
    A("s_mul_i32 s45, s96, 102400\ns_mul_i32 s46, s97, 160\ns_add_u32 s45, s45, s46\ns_lshl_b32 s46, s49, 10")
    for i in range(4):
        A(f"v_add_u32 v5, {256*i-256}, v0\nv_mul_u32_u24 v6, 6554, v5\nv_lshrrev_b32 v6, 16, v6\nv_mul_u32_u24 v6, 1120, v6\nv_lshl_add_u32 v6, v5, 4, v6")
        if i == 3: A(f"v_mov_b32 v7, {OOB}\nv_cmp_gt_u32 vcc, 800, v5\nv_cndmask_b32 v6, v7, v6, vcc")
        A(f"s_add_u32 m0, s46, {XB+20480+4096*i}\nbuffer_load_dwordx4 v6, s[24:27], s45 offen lds")
def loaders(A):
    B = g_stream(A, "B"); C = g_stream(A, "C")
    W = "s_waitcnt vmcnt(9)"; WB = W + "\ns_barrier"
    for kind in ("kv", "q"):
        L = f"l{kind}"
        A(f"{L}:"); S = a_stream(A, kind)
        S.issue(True); S.issue(); A("v_and_b32 v6, 255, v0"); npo = bulk(A, 6); masks(A)
        A(f"s_waitcnt vmcnt({9+npo})\ns_barrier\n{L}_ld:"); S.issue(); A(f"{WB}\ns_cmp_lt_u32 s58, 8\ns_cbranch_scc1 {L}_ld")
        poll_issue(A, L+"i", "s28", 24); S.issue(); A(W); poll_check(A, L+"i", "s28", 1, 24); A("s_barrier")
        poll_issue(A, L+"h", "s29"); S.issue(); A(W); stamp(A, 2)
        if kind == "kv": A("s_mov_b32 s99, 1\ns_cmp_lg_u32 s98, 0\ns_cbranch_scc1 l_nob\ns_branch l_be")
        else: A("s_mov_b32 s99, 0")
    A("l_be:"); poll_check(A, "l_be", "s29", 64); A("s_barrier"); stat_ld(A)
    if opt('ep', 0):
        n = pf_w1(A); B.setup(); B.issue(); A(f"s_waitcnt vmcnt({9+n})\ns_barrier"); B.issue(); A("s_barrier\ns_barrier"); B.issue(); n = 0
    else:
        B.setup(); B.issue(); A(WB); B.issue(); A("s_barrier\ns_barrier"); B.issue()
        KH = opt('kh', 1)
        A("s_cmp_eq_u32 s99, 0\ns_cbranch_scc1 l_bq"); pf_w1h(A, 0)
        if not KH: pf_w1h(A, 1)
        A("s_barrier\ns_barrier\ns_barrier\ns_branch l_bj\nl_bq:\ns_barrier\ns_barrier"); pf_w1h(A, 0)
        if not KH: pf_w1h(A, 1)
        A("l_bj:")
        if KH: pf_w1h(A, 1)
        A("s_waitcnt vmcnt(20)\ns_barrier\ns_waitcnt vmcnt(11)\ns_barrier"); B.issue(); A("s_waitcnt vmcnt(11)\ns_barrier")
    A("l_bl:"); B.issue(); A(f"{WB}\ns_cmp_lt_u32 s58, 15\ns_cbranch_scc1 l_bl")
    DC = opt('dc', 2); CP = opt('cp', 3)
    if not DC: poll_issue(A, "l_bp", "s30")
    B.issue(); A(W); stamp(A, 3)
    A("s_cmp_eq_u32 s98, 3\ns_cbranch_scc1 l_bx")
    if DC == 2:
        A("s_barrier"); C.setup(); A("s_waitcnt vmcnt(0)\ns_barrier"); poll_issue(A, "l_bp", "s30"); A("s_barrier\ns_waitcnt vmcnt(0)")
        if opt('hy', 1):
            A("v_mov_b32 v35, 163824\ns_cmp_lg_u32 s49, 0\ns_cbranch_scc1 l_h0\nds_write_b32 v35, v34\ns_waitcnt lgkmcnt(0)\nl_h0:\ns_barrier\nds_read_b32 v34, v35\ns_waitcnt lgkmcnt(0)\nv_readfirstlane_b32 s55, v34\ns_nop 1\ns_cmp_lt_u32 s55, 8\ns_cbranch_scc1 l_bx2")
        else: poll_check(A, "l_ce", "s30", 8); A("s_barrier")
        C.issue(); C.issue(); C.issue(); n = int(CP < 3); assert CP
    elif DC == 1:
        A("s_barrier"); poll_issue(A, "l_bp", "s30"); C.setup(); A("s_waitcnt vmcnt(0)\ns_barrier")
        poll_check(A, "l_ce", "s30", 8); A("s_barrier"); C.issue(); C.issue(); A("s_barrier"); C.issue(); n = int(CP < 3); assert CP
    elif opt('ep2', 0):
        poll_check(A, "l_ce", "s30", 8); A("s_barrier"); n = pf_w2(A); C.setup()
        C.issue(); A(f"s_waitcnt vmcnt({9+n})\ns_barrier"); C.issue(); A("s_barrier\ns_barrier"); C.issue(); n = 0
    else:
        poll_check(A, "l_ce", "s30", 8); A("s_barrier"); C.setup()
        C.issue(); A(WB); C.issue(); A("s_barrier\ns_barrier"); C.issue(); n = int(CP < 3)
        if not CP: pf_w2(A)
    A("s_barrier\nl_ce3:\ns_barrier")
    if CP in (1, 2): A(f"s_cmp_eq_u32 s98, 1\ns_cselect_b32 s35, {0 if CP == 2 else 472}, 472"); pf_w2(A, "s35")
    A(f"s_barrier\ns_waitcnt vmcnt({18+n})\ns_barrier\ns_waitcnt vmcnt({9+n})\ns_barrier")
    A(f"l_c0:\ns_mov_b32 s99, 0x0c0703\ns_mov_b32 s34, {0x200b08 if IM else 0x202c08}")
    A("l_cl:\ns_and_b32 s62, s99, 255\ns_cmp_lg_u32 s58, s62\ns_cbranch_scc1 l_c1"); poll_issue(A, "l_cq", "s31"); A("l_c1:"); C.issue(); A(W)
    A("s_add_u32 s62, s62, 1\ns_cmp_lg_u32 s58, s62\ns_cbranch_scc1 l_c2\ns_and_b32 s35, s34, 255"); poll_check(A, "l_cp", "s31", "s35")
    if STAMP and opt('cst', 0): A("s_mov_b64 s[64:65], s[66:67]\ns_mov_b64 s[66:67], s[68:69]\ns_mov_b64 s[68:69], s[70:71]\ns_memrealtime s[70:71]\ns_waitcnt lgkmcnt(0)")
    A("s_mov_b32 s31, s32\ns_mov_b32 s32, s33\ns_lshr_b32 s99, s99, 8\ns_lshr_b32 s34, s34, 8\nl_c2:\ns_barrier\ns_cmp_lt_u32 s58, 19\ns_cbranch_scc1 l_cl")
    stamp(A, 4)
    A("s_waitcnt vmcnt(0)\ns_barrier\ns_barrier"); stamp_out(A, 0); A("s_endpgm")
    A("l_nob:"); poll_check(A, "l_nb", "s29", 64); A("s_barrier"); stat_ld(A); A("s_waitcnt vmcnt(0)\ns_barrier")
    R0 = opt('r0', 704); RA = (1728-R0)//2; OE = opt('oe', 1)
    A("s_barrier\ns_barrier")
    if OE: A("s_mov_b32 s35, 0"); pf_w2r(A, R0)
    A("s_barrier\ns_cmp_lg_u32 s98, 1\ns_cbranch_scc1 l_clate")
    A(f"v_mov_b32 v34, 0\nv_mov_b32 v35, 163824\nds_write_b32 v35, v34\ns_mov_b32 s59, {2*CSLOT}"); C.setup()
    A("s_waitcnt lgkmcnt(0)\ns_barrier")
    if CP == 2: pf_w2(A)
    if CP == 3 and not OE: A("s_mov_b32 s35, 0"); pf_w2r(A, R0)
    A("s_barrier\ns_barrier\ns_barrier"); poll_check(A, "l_op", "s30", 8)
    A("s_cmp_lg_u32 s49, 0\ns_cbranch_scc1 l_ow\nv_mov_b32 v34, 1\nds_write_b32 v35, v34\nl_ow:\nds_read_b32 v34, v35\ns_waitcnt lgkmcnt(0)\nv_readfirstlane_b32 s55, v34\ns_nop 1\ns_cmp_eq_u32 s55, 0\ns_cbranch_scc1 l_ow")
    C.issue(); C.issue(); C.issue(); n and not CP and pf_w2(A); A("s_branch l_ce3")
    A("l_bx:\ns_barrier\ns_waitcnt vmcnt(0)\ns_barrier\ns_barrier\ns_barrier\nl_bx2:\ns_barrier")
    A(f"l_clate:\ns_mov_b32 s59, {2*CSLOT}"); C.setup(); A("v_mov_b32 v34, 0\ns_barrier")
    if CP == 3: A(f"s_cmp_lg_u32 s98, 3\ns_cbranch_scc1 l_np2\ns_barrier\ns_cmp_ge_u32 s41, 28\ns_cselect_b32 s35, {RA}, 0\ns_add_u32 s35, s35, {R0}"); pf_w2r(A, RA); A("l_np2:")
    else: pf_w2(A)
    poll_check(A, "l_cx", "s30", 8); A("s_barrier")
    C.issue(); C.issue(); A(f"{WB}\ns_branch l_c0")
    A("laux:"); masks(A); A("v_mov_b32 v34, 0"); poll_check(A, "l_ai", "s28", 1, 24); A("s_waitcnt vmcnt(0)\ns_barrier")
    A("s_barrier"); srd(A, 20, 6, SZ_WQKV); A("v_and_b32 v6, 255, v0"); bulk(A, 6)
    A(f"s_mov_b32 s59, {CSLOT}"); B.setup(); AH < 512 and pf_w1h(A, 0, 4*AH, 512-AH); LAT & 1 and wo_ld(A); A("v_mov_b32 v34, 0"); poll_check(A, "l_ax", "s29", 64); A("s_barrier"); stamp(A, 2)
    if opt('r4', 1):
        if opt('rot', 0): A(f"s_cmp_ge_u32 s41, 28\ns_cselect_b32 s34, {1024*3456}, 0\ns_cselect_b32 s35, {16*81920}, 0\ns_add_u32 s51, s51, s34\ns_add_u32 s52, s52, s35\ns_lshl_b32 s34, s34, 1\ns_lshl_b32 s35, s35, 1")
        for _ in range(2): B.issue(nsl=4)
        A("l_b4:"); B.issue(nsl=4)
        if opt('rot', 0): A("s_cmp_eq_u32 s58, 8\ns_cselect_b32 s45, s34, 0\ns_cselect_b32 s46, s35, 0\ns_sub_u32 s51, s51, s45\ns_sub_u32 s52, s52, s46")
        A(f"s_waitcnt vmcnt(18)\ns_barrier\ns_cmp_lt_u32 s58, 16\ns_cbranch_scc1 l_b4\n{W}"); stamp(A, 3); A("s_branch l_bx")
        return
    B.issue(); B.issue(); n = pf_w2(A) if opt('e2', 0) else 0; A(f"s_waitcnt vmcnt({9+n})\ns_barrier\ns_branch l_bl")

def atom(A, L, o, m):
    if L: A(f"s_cmp_lg_u32 s42, 0\ns_cbranch_scc1 {L}_np")
    srd(A, 8, 14, 256*ZS, WS_Z)
    A(f"v_mul_u32_u24 v2, {ZS}, v1\nv_mov_b32 v3, s61\ns_mov_b32 exec_lo, s{m}\ns_mov_b32 exec_hi, 0\nbuffer_atomic_add v3, v2, s[8:11], s{o} offen sc1\ns_mov_b64 exec, -1")
def publish(A, L):
    A(f"s_cmp_eq_u32 s57, 0\ns_cbranch_scc1 {L}_p0\ns_waitcnt vmcnt(0)\n{L}_p0:\ns_barrier\ns_cbranch_scc1 {L}_np")
    atom(A, L, 56, 57); A(f"{L}_np:")

def main(A):
    k = KN
    A(f".globl {k}\n.p2align 8\n.type {k},@function\n{k}:\ns_cmp_ge_u32 s2, 256\ns_cbranch_scc1 k_end")
    for i in range(6): stamp(A, i)
    A("s_load_dwordx4 s[4:7], s[0:1], 0\ns_load_dwordx2 s[12:13], s[0:1], 16\ns_load_dwordx8 s[84:91], s[0:1], 32\ns_load_dwordx4 s[92:95], s[0:1], 64\ns_load_dwordx2 s[14:15], s[0:1], 80")
    A("v_and_b32 v1, 63, v0\nv_lshrrev_b32 v2, 6, v0\ns_and_b32 s40, s2, 7\ns_lshr_b32 s41, s2, 3\nv_readfirstlane_b32 s42, v2")
    A("s_lshr_b32 s46, s40, 1\ns_lshl_b32 s43, s46, 2\ns_and_b32 s45, s41, 3\ns_add_u32 s43, s43, s45")
    A("s_and_b32 s44, s40, 1\ns_lshl_b32 s97, s44, 2\ns_add_u32 s97, s97, s45\ns_lshr_b32 s45, s41, 2\ns_sub_u32 s49, s42, 4\ns_mov_b32 s98, 0\ns_mov_b32 s61, 1")
    A("s_cmp_ge_u32 s41, 24\ns_cbranch_scc1 r_aux\ns_cmp_ge_u32 s41, 16\ns_cbranch_scc1 r_q")
    A("s_lshl_b32 s44, s44, 2\ns_add_u32 s44, s44, s45\ns_mul_i32 s47, s44, 160\ns_add_u32 s47, s47, 1280")
    A("s_mul_i32 s96, s46, 3\ns_add_u32 s96, s96, s45\ns_add_u32 s96, s96, 16\ns_cmp_ge_u32 s96, 27\ns_cselect_b32 s98, 2, 0\ns_cmp_eq_u32 s45, 3\ns_cselect_b32 s98, 1, s98")
    A("s_cmp_lt_u32 s42, 4\ns_cbranch_scc1 ckv")
    loaders(A)
    A("r_q:\ns_lshl_b32 s96, s46, 1\ns_add_u32 s96, s96, s45\ns_add_u32 s96, s96, 4\ns_lshl_b32 s44, s44, 1\ns_add_u32 s44, s44, s45\ns_sub_u32 s44, s44, 4\ns_mul_i32 s47, s44, 320")
    A("s_cmp_ge_u32 s42, 4\ns_cbranch_scc1 lq")
    A(f"s_mul_i32 s56, s44, {8*ZS}\ns_add_u32 s56, s56, {8*ZS}\ns_mov_b32 s57, 255\ns_mov_b32 s58, {104*ZS}\ns_movk_i32 s61, 0x100")
    a_cons(A, "q"); A("s_branch cB")
    A("r_aux:\ns_lshl_b32 s96, s46, 1\ns_add_u32 s96, s96, s45\ns_sub_u32 s96, s96, 6\ns_mov_b32 s98, 3")
    A("s_sub_u32 s44, s41, 24\ns_lshl_b32 s43, s40, 3\ns_add_u32 s43, s43, s44")
    aux_job(A)
    A(f"s_cmp_ge_u32 s42, 4\ns_cbranch_scc1 laux\ns_mov_b32 s56, 0\ns_mov_b32 s57, 255\ns_mov_b32 s58, {40*ZS}")
    stamp(A, 4); publish(A, "ax"); stamp_out(A, 0); A("s_mov_b32 s57, 0\ns_branch cB")
    A("cO:"); stamp(A, 0); publish(A, "cO")
    A("s_lshl_b32 s45, s40, 2\ns_add_u32 s45, s45, s41\ns_sub_u32 s45, s45, 12\ns_and_b32 s43, s45, 7\ns_lshr_b32 s44, s45, 3")
    srd(A, 16, 14, SZ_KVP, WS_KVP); srd(A, 20, 14, SZ_X, WS_PQ); srd(A, 24, 14, SZ_X, WS_OT)
    A(f"s_lshl_b32 s60, s43, 2\ns_add_u32 s60, s60, s44\ns_mul_i32 s60, s60, {ZS}\ns_add_u32 s60, s60, {8*ZS}\ns_mul_i32 s58, s44, {2*ZS}\ns_add_u32 s58, s58, {232*ZS}\ns_mov_b32 s59, 3\ns_mov_b32 s57, 0\nv_mov_b32 v34, 0")
    srd(A, 8, 14, 256*ZS, WS_Z)
    poll_check(A, "cO", "s60", 0x1000, 8, "s42"); A("s_barrier")
    o_cons(A); A("s_branch cC")
    A(f"ckv:\ns_mul_i32 s56, s44, {4*ZS}\ns_add_u32 s56, s56, {8*ZS}\ns_mov_b32 s57, 15\ns_mov_b32 s58, {168*ZS}\ns_mov_b32 s59, 0")
    A("s_or_b32 s45, s2, s42\ns_cmp_lg_u32 s45, 0\ns_cbranch_scc1 ckv2\ns_waitcnt lgkmcnt(0)")
    srd(A, 8, 14, 256*ZS, WS_Z); srd(A, 24, 94, 256)
    A(f"v_mul_u32_u24 v2, {ZS}, v1\nv_mov_b32 v3, 0\nbuffer_store_dword v3, v2, s[8:11], 0 offen sc1\ns_mov_b32 s45, {64*ZS}\nbuffer_store_dword v3, v2, s[8:11], s45 offen sc1\ns_mov_b32 s45, {128*ZS}\nbuffer_store_dword v3, v2, s[8:11], s45 offen sc1\ns_mov_b32 s45, {192*ZS}\nbuffer_store_dword v3, v2, s[8:11], s45 offen sc1\nv_lshlrev_b32 v2, 7, v1\nv_mov_b32 v4, 1\ns_waitcnt vmcnt(0)\nbuffer_store_dword v4, v2, s[24:27], 0 offen sc1\nckv2:")
    a_cons(A, "kv")
    A("s_cmp_eq_u32 s98, 1\ns_cbranch_scc1 cO\ns_cmp_eq_u32 s98, 2\ns_cbranch_scc1 cC")
    A("cB:")
    def midB():
        A("s_mov_b32 s61, 1\ns_cmp_lg_u32 s98, 3\ns_cbranch_scc1 cB_nw"); aux_wo(A); A("cB_nw:")
        srd(A, 24, 14, SZ_UW, WS_UW); srd(A, 28, 86, 1728*2)
        A("s_and_b32 s45, s42, 1\ns_lshl_b32 s45, s45, 6\ns_lshr_b32 s46, s42, 1\ns_lshl_b32 s46, s46, 5\ns_add_u32 s45, s45, s46\ns_lshl_b32 s47, s96, 7\ns_add_u32 s45, s45, s47\nv_lshrrev_b32 v2, 4, v1\nv_lshlrev_b32 v2, 3, v2\nv_add_u32 v2, s45, v2")
        A("buffer_load_dwordx2 v[18:19], v2, s[28:31], 0 offen")
        A(f"v_subrev_u32 v2, s47, v2\nv_and_b32 v3, 15, v1\nv_mul_u32_u24 v3, 144, v3\nv_add_u32 v3, {XB+36864}, v3\nv_add_u32 v16, v2, v3")
        A(f"v_lshrrev_b32 v2, 3, v0\nv_and_b32 v3, 7, v0\nv_mul_u32_u24 v14, 144, v2\nv_lshl_add_u32 v14, v3, 4, v14\nv_add_u32 v14, {XB+36864}, v14")
        A(f"s_mul_i32 s45, s97, 80\nv_add_u32 v2, s45, v2\nv_mul_u32_u24 v2, 4736, v2\nv_lshl_add_u32 v2, v3, 4, v2\nv_add_u32 v15, s47, v2\nv_mov_b32 v3, {OOB}\nv_cmp_gt_u32 vcc, 128, v0\nv_cndmask_b32 v17, v3, v15, vcc")
    core_cons(A, "cB", 32, True, 1, None, midB)
    c0 = -2*0.7978845608028654*LOG2E
    A(f"s_mul_i32 s45, s97, {8*ZS}\ns_add_u32 s56, s45, s58\ns_cmp_eq_u32 s58, {168*ZS}\ns_cselect_b32 s57, {255*IM}, 255\ns_cselect_b32 s59, {255*(1-IM)}, 0\ns_add_u32 s58, s45, {168*ZS}")
    A(f"s_mov_b32 s62, {f2u(c0*0.044715)}\nv_mov_b32 v9, {f2u(c0)}\ns_mov_b32 s46, 0")
    for h in range(2): A(f"v_lshlrev_b32 v{32+2*h}, 16, v{18+h}\nv_and_b32 v{33+2*h}, 0xffff0000, v{18+h}")
    for r in range(20): A(f"v_add_f32 v{96+r}, v{96+r}, v{32+(r&3)}")
    for r in range(20): A(f"v_mul_f32 v{48+r}, v{96+r}, v{96+r}")
    for r in range(20): A(f"v_fma_f32 v{48+r}, v{48+r}, s62, v9")
    for r in range(20): A(f"v_mul_f32 v{48+r}, v{48+r}, v{96+r}")
    for r in range(20): A(f"v_exp_f32 v{48+r}, v{48+r}")
    for r in range(20): A(f"v_add_f32 v{48+r}, 1.0, v{48+r}")
    for rt in range(5):
        for r in range(4*rt, 4*rt+4): A(f"v_rcp_f32 v{48+r}, v{48+r}")
        for r in range(4*rt, 4*rt+4): A(f"v_mul_f32 v{96+r}, v{96+r}, v{48+r}")
        A(f"v_cvt_pk_bf16_f32 v{70+2*rt}, v{96+4*rt}, v{97+4*rt}\nv_cvt_pk_bf16_f32 v{71+2*rt}, v{98+4*rt}, v{99+4*rt}")
        A(f"ds_write_b64 v16, {vr(70+2*rt,2)} offset:{16*144*rt}")
    A("s_waitcnt lgkmcnt(0)\ns_barrier")
    for i in range(3): A(f"ds_read_b128 {vr(48+4*i,4)}, v14 offset:{32*144*i}")
    for i in range(3): A(f"s_waitcnt lgkmcnt({2-i})\nbuffer_store_dwordx4 {vr(48+4*i,4)}, v{17 if i == 2 else 15}, s[24:27], s46 offen sc1\ns_add_u32 s46, s46, {32*4736}")
    stamp_out(A, 1)
    A("cC:")
    def midC():
        srd(A, 24, 92, SZ_X); srd(A, 28, 4, SZ_X); srd(A, 32, 90, 4096)
        A("s_lshl_b32 s45, s40, 2\ns_and_b32 s46, s41, 3\ns_add_u32 s45, s45, s46\ns_lshl_b32 s45, s45, 6\ns_and_b32 s46, s42, 1\ns_lshl_b32 s46, s46, 5\ns_add_u32 s45, s45, s46\ns_lshr_b32 s46, s42, 1\ns_lshl_b32 s46, s46, 4\ns_add_u32 s45, s45, s46\nv_and_b32 v2, 15, v1\nv_add_u32 v2, s45, v2\nv_lshlrev_b32 v3, 1, v2")
        A("v_mul_u32_u24 v16, 1280, v2\nv_lshrrev_b32 v4, 4, v1\nv_lshl_add_u32 v16, v4, 3, v16\ns_lshr_b32 s45, s41, 2\ns_mul_i32 s45, s45, 160\nv_add_u32 v16, s45, v16")
        for rt in range(5): A(f"buffer_load_dwordx2 {vr(82+2*rt,2)}, v16, s[28:31], 0 offen offset:{32*rt}")
        A("buffer_load_ushort v92, v3, s[32:35], 0 offen")
    def pubC():
        A("s_cmp_lg_u32 s98, 3\ns_cbranch_scc1 cC_nx\ns_barrier\ncC_nx:")
        A(f"s_cmp_lg_u32 s59, 0\ns_cselect_b32 s60, {opt('defat', 1)}, 0")
        if opt('od', 1): A(f"s_cmp_eq_u32 s98, 1\ns_cselect_b32 s60, {opt('od', 1)}, s60")
    core_cons(A, "cC", 37, False, 2, pubC, midC)
    A("v_lshlrev_b32 v92, 16, v92")
    for rt in range(5):
        a = 96+4*rt; x = 82+2*rt; t = 32+4*rt
        for h in range(2): A(f"v_lshlrev_b32 v{t+2*h}, 16, v{x+h}\nv_and_b32 v{t+2*h+1}, 0xffff0000, v{x+h}")
        for r in range(4): A(f"v_add_f32 v{a+r}, v{a+r}, v92")
        for r in range(4): A(f"v_add_f32 v{a+r}, v{a+r}, v{t+r}")
        A(f"v_cvt_pk_bf16_f32 v{x}, v{a}, v{a+1}\nv_cvt_pk_bf16_f32 v{x+1}, v{a+2}, v{a+3}")
        A(f"buffer_store_dwordx2 {vr(x,2)}, v16, s[24:27], 0 offen offset:{32*rt}")
    stamp_out(A, 2)
    A("k_end:\ns_endpgm\ncC_def:\ns_waitcnt vmcnt(0)"); atom(A, None, 58, 59); A("s_branch cCd_np")

KN = "m_kernel"
def build():
    assert all((c*3277)>>16 == c//20 for c in range(1280)) and all((c*6554)>>16 == c//10 for c in range(1280)) and all((c*52)>>8 == c//5 for c in range(25)) and all((c*4370)>>16 == c//15 for c in range(256))
    A = Asm(); main(A)
    hdr = "; generated by gen2.py (hand-written generator): one launch, per-workgroup job chain (qkv|LN) -> (token GEMM1|attn normalise) -> GEMM2+out-proj\n"
    hdr += f"; @launch kernel={KN} grid=(256,1,1) block=(512,1,1) lds=163840\n"
    hdr += '.amdgcn_target "amdgcn-amd-amdhsa--gfx950"\n.text\n'
    return hdr + A.finish() + f""".section .rodata,"a"
.p2align 6
.amdhsa_kernel {KN}
  .amdhsa_next_free_vgpr 256
  .amdhsa_next_free_sgpr 100
  .amdhsa_accum_offset 256
  .amdhsa_group_segment_fixed_size 0
  .amdhsa_kernarg_size 88
  .amdhsa_user_sgpr_count 2
  .amdhsa_user_sgpr_kernarg_segment_ptr 1
  .amdhsa_system_sgpr_workgroup_id_x 1
.end_amdhsa_kernel
"""
if __name__ == "__main__":
    STAMP = "stamp" in sys.argv
    out = sys.argv[1] if len(sys.argv) > 1 else f"cdna_kernels/{NAME}.s"
    open(out, "w").write(build())
```
